```python
import torch

def _softmax(x, axis=-1):
    return torch.softmax(x, dim=axis)
def _gelu(x):
    return torch.nn.functional.gelu(x, approximate="tanh")
def _silu(x):
    return torch.nn.functional.silu(x)
def _sigmoid(x):
    return torch.sigmoid(x)
def _layernorm(x, axis=-1, eps=1e-5):
    m = x.mean(dim=axis, keepdim=True)
    v = x.var(dim=axis, keepdim=True, unbiased=False)
    return (x - m) / torch.sqrt(v + eps)
def _scatter_add(tgt, idx, src, axis=0):
    return tgt.clone().index_add_(axis, idx, src)
def _segment_sum(src, seg, n):
    out = torch.zeros((n,) + src.shape[1:], dtype=src.dtype)
    return out.index_add_(0, seg, src)
def _pad(x, pw):
    flat = tuple(v for pair in reversed(pw) for v in pair)
    return torch.nn.functional.pad(x, flat)

kernel_name = 'sequential_preLN__mha_block_cached__glu_gated_reglu__decode'

def setup_inputs():

    _w = (lambda a: (lambda t: t.to(torch.bfloat16) if t.is_floating_point() else t)(torch.as_tensor(a)))
    def _A_setup():
        B, Sq, D = 1, 1, 640
        H, Sk, Dh = 32, 8192, 192
        return {
            "x": _w((lambda *s: torch.randn(*s, dtype=torch.bfloat16) * 0.05)(B, Sq, D)),
            "k_cache": _w((lambda *s: torch.randn(*s, dtype=torch.bfloat16) * 1.6)(B, H, Sk, Dh)),
            "v_cache": _w((lambda *s: torch.randn(*s, dtype=torch.bfloat16) * 0.8)(B, H, Sk, Dh)),
            "wq": _w((lambda *s: torch.randn(*s, dtype=torch.bfloat16) * 1.6)(D, H * Dh) * (D ** -0.5)),
            "wo": _w((lambda *s: torch.randn(*s, dtype=torch.bfloat16) * 0.8)(H * Dh, D) * ((H * Dh) ** -0.5)),
        }
    _A_in = _A_setup()

    def _B_setup():
        B, S, D, F = 1, 1, 640, 1536
        return {
            "x": _w((lambda *s: torch.randn(*s, dtype=torch.bfloat16) * 0.05)(B, S, D)),
            "W_gate": _w((lambda *s: torch.randn(*s, dtype=torch.bfloat16) * 0.4)(D, F) * (2.0 / D) ** 0.5),
            "W_up": _w((lambda *s: torch.randn(*s, dtype=torch.bfloat16) * 0.4)(D, F) * (2.0 / D) ** 0.5),
            "W_down": _w((lambda *s: torch.randn(*s, dtype=torch.bfloat16) * 0.4)(F, D) * (1.0 / F) ** 0.5),
        }
    _B_in = _B_setup()

    return {
        "A_x": _A_in["x"],
        "A_k_cache": _A_in["k_cache"],
        "A_v_cache": _A_in["v_cache"],
        "A_wq": _A_in["wq"],
        "A_wo": _A_in["wo"],
        "B_x": _B_in["x"],
        "B_W_gate": _B_in["W_gate"],
        "B_W_up": _B_in["W_up"],
        "B_W_down": _B_in["W_down"],
    }

def reference(A_x, A_k_cache, A_v_cache, A_wq, A_wo, B_x, B_W_gate, B_W_up, B_W_down):
    def _A_ref(x, k_cache, v_cache, wq, wo):
        B, Sq, D = x.shape
        H, Dh = 32, 192
        q = (lambda x, *d: x.permute(*d))((x @ wq).reshape(B, Sq, H, Dh), 0, 2, 1, 3)
        scores = torch.einsum("bhqd,bhkd->bhqk", q, k_cache) * (Dh ** -0.5)
        p = _softmax(scores, axis=-1)
        o = torch.einsum("bhqk,bhkd->bhqd", p, v_cache)
        return (lambda x, *d: x.permute(*d))(o, 0, 2, 1, 3).reshape(B, Sq, H * Dh) @ wo

    def _B_ref(x, W_gate, W_up, W_down):
        gate = torch.einsum("bsd,df->bsf", x, W_gate)
        up = torch.einsum("bsd,df->bsf", x, W_up)
        gate = gate * (lambda x, dt: x.to(dt))(gate > 0, gate.dtype)
        h = gate * up
        return torch.einsum("bsf,fd->bsd", h, W_down)

    x = A_x
    h = x + _A_ref(_layernorm(x, axis=-1), A_k_cache, A_v_cache, A_wq, A_wo)
    h2 = h + _B_ref(_layernorm(h, axis=-1), B_W_gate, B_W_up, B_W_down)
    return h2
```

```python
import re

TRANS = ("v_exp_f32", "v_log_f32", "v_rcp_f32", "v_rsq_f32", "v_sqrt_f32", "v_sin_f32", "v_cos_f32",
         "v_rcp_iflag_f32")

def _regs(tok):
    tok = tok.strip()
    tok = tok.lstrip('-')
    m = re.fullmatch(r"abs\((.*)\)", tok)
    if m: tok = m.group(1)
    m = re.fullmatch(r"\|(.*)\|", tok)
    if m: tok = m.group(1)
    m = re.fullmatch(r"([vsa])(\d+)", tok)
    if m: return [m.group(1) + m.group(2)]
    m = re.fullmatch(r"([vsa])\[(\d+):(\d+)\]", tok)
    if m: return [m.group(1) + str(i) for i in range(int(m.group(2)), int(m.group(3)) + 1)]
    if tok in ("vcc", "vcc_lo", "vcc_hi"): return ["vcc"]
    if tok in ("exec", "exec_lo", "exec_hi"): return ["exec"]
    if tok == "m0": return ["m0"]
    return []

class Ins:
    def __init__(self, text):
        self.text = text
        t = text.split(";")[0].strip()
        parts = t.split(None, 1)
        self.op = parts[0]
        rest = parts[1] if len(parts) > 1 else ""
        ops, depth, cur = [], 0, ""
        for ch in rest:
            if ch in "[(": depth += 1
            if ch in "])": depth -= 1
            if ch == "," and depth == 0:
                ops.append(cur.strip()); cur = ""
            else:
                cur += ch
        if cur.strip(): ops.append(cur.strip())
        self.mods = ""
        if ops:
            last = ops[-1].split(None, 1)
            ops[-1] = last[0]
            if len(last) > 1: self.mods = last[1]
        self.ops = ops
        op = self.op
        self.is_mfma = op.startswith("v_mfma")
        self.is_valu = op.startswith("v_") and not self.is_mfma
        self.is_salu = op.startswith("s_") and not op.startswith(("s_load", "s_buffer_load", "s_waitcnt", "s_nop",
                        "s_barrier", "s_branch", "s_cbranch", "s_endpgm", "s_memtime", "s_memrealtime", "s_sleep", "s_setprio", "s_atomic"))
        self.is_vmem = op.startswith(("buffer_", "global_", "flat_"))
        self.is_ds = op.startswith("ds_")
        self.is_dpp = ("_dpp" in op) or any(k in self.mods for k in ("quad_perm", "row_shr", "row_shl", "row_ror", "row_bcast", "row_mirror", "row_half_mirror", "wave_", "row_newbcast"))
        self.is_trans = any(op.startswith(x) for x in TRANS)
        self.is_dot = op.startswith("v_dot")
        self.is_perm = op.startswith("v_permlane")
        self.is_rdlane = op.startswith(("v_readlane", "v_readfirstlane"))
        self.is_wrlane = op.startswith("v_writelane")
        w, r = [], []
        R = [_regs(o) for o in ops]
        if self.is_mfma:
            w = R[0]; r = R[1] + R[2] + R[3]; self.A = R[1]; self.B = R[2]; self.C = R[3]
        elif self.is_valu:
            base = op.replace("_e32", "").replace("_e64", "").replace("_dpp", "").replace("_sdwa", "")
            if base.startswith("v_cmpx"):
                w = R[0] + ["exec"]; r = sum(R[1:], [])
            elif base.startswith("v_cmp"):
                w = R[0]; r = sum(R[1:], [])
            elif base in ("v_add_co_u32", "v_sub_co_u32", "v_addc_co_u32", "v_subb_co_u32", "v_subrev_co_u32", "v_div_scale_f32", "v_mad_u64_u32"):
                w = R[0] + R[1]; r = sum(R[2:], [])
            elif self.is_perm:
                w = R[0] + R[1]; r = R[0] + R[1]
            elif base == "v_nop":
                pass
            else:
                w = R[0]; r = sum(R[1:], [])
                if base.startswith(("v_fmac", "v_pk_fmac", "v_dot2c", "v_writelane")) or self.is_dpp:
                    r = r + R[0]
                if base == "v_div_fmas_f32": r = r + ["vcc"]
        elif self.is_vmem:
            if "load" in op:
                if "lds" in op or re.search(r"\blds\b", self.mods):
                    r = sum(R, []) + ["m0"]
                else:
                    w = R[0]; r = sum(R[1:], [])
            elif "atomic" in op:
                r = sum(R, [])
                if "sc0" in self.mods:
                    w = R[0]
            else:
                r = sum(R, [])
        elif self.is_ds:
            if op.startswith(("ds_read", "ds_bpermute", "ds_permute", "ds_swizzle")) or "_rtn" in op:
                w = R[0]; r = sum(R[1:], [])
            else:
                r = sum(R, [])
        elif op.startswith(("s_load", "s_buffer_load", "s_memtime", "s_memrealtime")):
            w = R[0]; r = sum(R[1:], [])
        elif self.is_salu:
            if op.startswith(("s_cmp", "s_bitcmp")):
                r = sum(R, [])
            else:
                w = R[0] if R else []
                r = sum(R[1:], [])
                if "saveexec" in op: w = w + ["exec"]; r = r + ["exec"]
        self.w = set(w); self.r = set(r)
        self.dpp_src = set(R[1]) if (self.is_dpp and self.is_valu and len(R) > 1) else set()
        self.wide_store = False
        self.store_data = set()
        if self.is_vmem and "store" in op and ("x3" in op or "x4" in op):
            self.wide_store = True
            self.store_data = set(R[0]) if op.startswith("buffer") else set(R[1])
        self.states = 1
        if op == "s_nop":
            self.states = int(ops[0], 0) + 1
        if self.is_mfma:
            if "32x32x16" in op or "32x32x8" in op: self.passes = 8
            elif "16x16x32" in op or "16x16x16" in op: self.passes = 4
            elif "4x4x4" in op: self.passes = 2
            else: raise ValueError("unknown mfma passes " + op)

def need_states(p, c):
    n = 0
    isv = lambda x: x[0] in "va" and x != "vcc"
    iss = lambda x: (x[0] == "s" or x == "vcc")
    pw_v = {x for x in p.w if isv(x)}
    pw_s = {x for x in p.w if iss(x)}
    if p.is_valu:
        if c.is_mfma and (pw_v & c.r): n = max(n, 3 if p.is_dot else 2)
        if c.is_valu and c.is_dpp and (pw_v & c.dpp_src): n = max(n, 2)
        if c.is_perm and (pw_v & c.r): n = max(n, 2)
        if c.is_rdlane and (pw_v & c.r): n = max(n, 1)
        if p.is_trans and (c.is_valu or c.is_mfma) and (pw_v & (c.r | c.w)): n = max(n, 1)
        if p.is_dot and (pw_v & (c.r | c.w)):
            if not (c.is_dot and c.op == p.op and not (pw_v & set(sum([_regs(o) for o in c.ops[1:3]], [])))):
                n = max(n, 3)
        if pw_s & c.r:
            if c.is_vmem: n = max(n, 5)
            elif c.is_rdlane or c.is_wrlane: n = max(n, 4)
            elif c.op.startswith("v_div_fmas"): n = max(n, 4)
            elif c.is_valu or c.is_mfma: n = max(n, 2)
            else: n = max(n, 1)
        if "exec" in p.w:
            if c.is_dpp: n = max(n, 5)
            if c.is_mfma or c.is_rdlane or c.is_wrlane or c.is_perm: n = max(n, 4)
            if c.is_valu and "exec" in c.r: n = max(n, 2)
        if ("sdwa" in p.op or "op_sel" in p.mods) and c.is_valu and (pw_v & (c.r | c.w)): n = max(n, 1)
    if p.is_mfma:
        D = p.w
        big = {2: 5, 4: 8, 8: 12, 16: 20}[p.passes]
        ovl = {2: 4, 4: 6, 8: 10, 16: 18}[p.passes]
        war = {2: 1, 4: 3, 8: 7, 16: 15}[p.passes]
        if c.is_mfma:
            if D & (set(c.A) | set(c.B)): n = max(n, big)
            if D & set(c.C):
                if not (set(c.C) == D and c.passes == p.passes): n = max(n, ovl)
                elif p.passes == 2: n = max(n, 2)
            elif D & c.w: n = max(n, big)
        elif c.is_valu or c.is_vmem or c.is_ds:
            if D & (c.r | c.w): n = max(n, big)
            if (set(p.C) & c.w): n = max(n, war)
    if p.wide_store and (p.store_data & c.w):
        n = max(n, 2)
    if p.is_salu and "m0" in p.w and "m0" in c.r: n = max(n, 1)
    if p.is_salu and "exec" in p.w and c.is_dpp: n = max(n, 1)
    return n

class Asm:
    def __init__(self):
        self.lines = []
    def __call__(self, text):
        for ln in text.split("\n"):
            s = ln.strip()
            if not s: continue
            body = s.split(";")[0].strip()
            if not body or body.endswith(":") or body.startswith("."):
                self.lines.append(("t", s))
            else:
                self.lines.append(("i", Ins(s)))
    def label(self, name):
        self.lines.append(("t", name + ":"))
    def render(self, autonop=True):
        out, hist = [], []
        nops = 0
        for kind, x in self.lines:
            if kind == "t":
                out.append(x); continue
            if autonop:
                need, dist = 0, 0
                for p in reversed(hist):
                    k = need_states(p, x) - dist
                    if k > need: need = k
                    dist += p.states
                    if dist >= 24: break
                while need > 0:
                    k = min(need, 16)
                    nop = Ins("s_nop %d" % (k - 1))
                    out.append("    " + nop.text); hist.append(nop); nops += 1
                    need -= k
            out.append("    " + x.text); hist.append(x)
        self.nops = nops
        return "\n".join(out) + "\n"

def kernel_desc(name, vgpr, sgpr=102, agpr=0):
    acc = (vgpr + 3) // 4 * 4
    nfv = acc + agpr if agpr else vgpr
    return f""".section .rodata,"a"
.p2align 6
.amdhsa_kernel {name}
  .amdhsa_next_free_vgpr {nfv}
  .amdhsa_next_free_sgpr {sgpr}
  .amdhsa_accum_offset {acc}
  .amdhsa_group_segment_fixed_size 0
  .amdhsa_kernarg_size 96
  .amdhsa_user_sgpr_count 2
  .amdhsa_user_sgpr_kernarg_segment_ptr 1
  .amdhsa_system_sgpr_workgroup_id_x 1
.end_amdhsa_kernel
"""
```

```python
import sys, json
from asmlib import *

NAME = "sequential_preLN__mha_block_cached__glu_gated_reglu__decode"
KNAME = NAME + "_kernel"

HDR = open("cdna_kernels/" + NAME + ".s.ref").read().split("; Override launch")[0]

QP = 0x0
OP = 0x40000
YP = 0x80000
ZP = 0x90000
ST = 0x100000
WS_BYTES = 402653184
L_QACC, L_QBF, L_MW, L_OACC, L_Y, L_G, L_U, L_STAT, L_H = 0, 768, 1152, 1280, 2112, 2112, 2368, 2624, 2688
LDS_BYTES = 5632
FULL = "row_mask:0xf bank_mask:0xf"
NWO, NFF = 80, 24

def gen(stamps=False, P=3, pol="nt", wpol="nt", split=12, spin=1 << 20, kname=KNAME):
    a = Asm()
    SLOT = lambda t, j=0: 64 + 12 * t + 4 * j
    def rng(r, n=4): return f"v[{r}:{r+n-1}]"
    def stamp(i):
        if stamps:
            a(f"""s_memrealtime s[92:93]
            s_waitcnt lgkmcnt(0)
            v_writelane_b32 v0, s92, {i}""")
    def dpp(op, v, ctl, mask=FULL): a(f"{op}_dpp v{v}, v{v}, v{v} {ctl} {mask}")
    def oct_red(op, vs):
        for ctl in ("quad_perm:[1,0,3,2]", "quad_perm:[2,3,0,1]", "row_half_mirror"):
            for v in vs: dpp(op, v, ctl)
    def grp_red(op, vs):
        for v in vs: dpp(op, v, "row_ror:8")
        for v in vs: dpp(op, v, "row_bcast:15", "row_mask:0xa bank_mask:0xf")
        for v in vs: dpp(op, v, "row_bcast:31", "row_mask:0xc bank_mask:0xf")
    def rbf(d, s):
        a(f"v_cvt_pk_bf16_f32 v{d}, v{s}, v{s}")
        a(f"v_and_b32 v{d}, 0xffff0000, v{d}")
    def unpack(dst, src, n):
        for i in range(n):
            a(f"v_lshlrev_b32 v{dst+2*i}, 16, v{src+i}")
            a(f"v_and_b32 v{dst+2*i+1}, 0xffff0000, v{src+i}")
    def bbuild(b, pp):
        for r in range(4): a(f"v_and_b32 v{b+r}, v{pp}, v{4+r}")
    def mfma(d, A, B, first=False):
        a(f"v_mfma_f32_16x16x32_bf16 {rng(d)}, {rng(A)}, {rng(B)}, " + ("0" if first else rng(d)))
    def srd(n, base, off_sgpr, size):
        if off_sgpr is None:
            a(f"""s_mov_b32 s{n}, s{base}
            s_mov_b32 s{n+1}, s{base+1}
            s_mov_b32 s{n+2}, {size}
            s_mov_b32 s{n+3}, 0x20000""")
        else:
            a(f"""s_add_u32 s{n}, s{base}, s{off_sgpr}
            s_addc_u32 s{n+1}, s{base+1}, 0
            s_sub_u32 s{n+2}, {size}, s{off_sgpr}
            s_mov_b32 s{n+3}, 0x20000""")
    def lds_red(dregs, base, vaddr):
        a("s_mov_b64 exec, s[90:91]")
        for j, d in enumerate(dregs):
            for r in range(4):
                a(f"ds_add_f32 v{vaddr}, v{d+r} offset:{base + 4*(64*j + 8*r)}")
        a("s_mov_b64 exec, -1")
    def issue_tile(t, srdn, voff):
        for j in range(3):
            a(f"buffer_load_dwordx4 {rng(SLOT(t,j))}, v{voff}, s[{srdn}:{srdn+3}], s{48+t} offen offset:{128*j} {pol}")
    npoll = [0]
    def poll_head():
        npoll[0] += 1
        a(f"s_mov_b32 s94, {spin}")
        a.label(f"L_poll{npoll[0]}")
    def poll_tail(sleep=0):
        n = npoll[0]
        a(f"s_cbranch_vccz L_pok{n}")
        if sleep: a(f"s_sleep {sleep}")
        a(f"""s_sub_u32 s94, s94, 1
        s_cmp_lg_u32 s94, 0
        s_cbranch_scc1 L_poll{n}""")
        a.label(f"L_pok{n}")
    def sent_check(regs, tmp):
        regs = list(regs)
        a(f"v_max3_u32 v{tmp}, v{regs[0]}, v{regs[1]}, v{regs[2]}")
        regs = regs[3:]
        while len(regs) >= 2:
            a(f"v_max3_u32 v{tmp}, v{tmp}, v{regs[0]}, v{regs[1]}"); regs = regs[2:]
        if regs: a(f"v_max_u32 v{tmp}, v{tmp}, v{regs[0]}")
        a(f"v_cmp_eq_u32 vcc, -1, v{tmp}")
        a("s_nop 4")
    def sanitize(regs):
        for r in regs: a(f"v_min_u32 v{r}, 0xfffffffe, v{r}")

    a(f"""
    s_cmp_ge_u32 s2, 256
    s_cbranch_scc1 L_exit
    s_load_dwordx16 s[4:19], s[0:1], 0
    s_load_dwordx8 s[20:27], s[0:1], 64
    v_lshrrev_b32 v2, 6, v0
    v_and_b32 v1, 63, v0
    v_readfirstlane_b32 s3, v2
    """)
    if stamps:
        a("s_memrealtime s[92:93]")
    a(f"""
    v_bfe_u32 v2, v1, 2, 2
    v_mul_u32_u24 v2, 768, v2
    v_lshrrev_b32 v3, 5, v1
    v_mul_u32_u24 v3, 384, v3
    v_add_u32 v2, v2, v3
    v_bfe_u32 v3, v1, 4, 1
    v_lshl_add_u32 v2, v3, 6, v2
    v_and_b32 v3, 3, v1
    v_lshl_add_u32 v2, v3, 4, v2
    s_mul_i32 s80, s2, 393216
    s_mul_i32 s81, s3, 49152
    s_add_u32 s80, s80, s81
    """)
    for t in range(16): a(f"s_mov_b32 s{48+t}, {t*3072}")
    a("s_waitcnt lgkmcnt(0)")
    if stamps: a("v_writelane_b32 v0, s92, 0")
    srd(28, 6, 80, 100663296)
    a("""s_cmp_eq_u32 s3, 0
    s_cbranch_scc1 L_skipK""")
    for t in range(16): issue_tile(t, 28, 2)
    a.label("L_skipK")
    srd(32, 8, 80, 100663296)
    srd(36, 26, None, WS_BYTES)
    srd(64, 4, None, 1280)
    a(f"""
    v_lshrrev_b32 v56, 3, v1
    v_and_b32 v57, 7, v1
    v_mul_u32_u24 v3, 384, v56
    v_lshl_add_u32 v3, v57, 4, v3
    v_and_b32 v58, 1, v1
    v_mov_b32 v59, 0xffff
    v_lshlrev_b32 v58, 4, v58
    v_lshlrev_b32 v59, v58, v59
    v_lshrrev_b32 v58, 1, v57
    s_mov_b32 s90, 0x00ff00ff
    s_mov_b32 s91, 0xff00ff00
    """)
    for r in range(4):
        a(f"v_cmp_eq_u32 vcc, {r}, v58")
        a(f"v_cndmask_b32 v{4+r}, 0, v59, vcc")
    a("""
    v_bfe_u32 v63, v1, 4, 1
    v_lshlrev_b32 v63, 5, v63
    v_add_lshl_u32 v63, v63, v57, 2
    s_cmp_lg_u32 s3, 0
    s_cbranch_scc1 L_bar1
    """)
    a(f"""
    s_lshr_b32 s82, s2, 3
    s_and_b32 s83, s2, 7
    s_mul_i32 s80, s83, {80*12288}
    s_mul_i32 s81, s82, 384
    s_add_u32 s80, s80, s81
    """)
    srd(40, 10, 80, 7864320)
    srd(68, 24, None, 256)
    a(f"""
    v_mul_u32_u24 v60, 20, v1
    v_mul_u32_u24 v61, 20, v56
    s_mul_i32 s81, s83, 160
    buffer_load_dwordx4 v[184:187], v60, s[64:67], 0 offen
    buffer_load_dword v188, v60, s[64:67], 0 offen offset:16
    buffer_load_dwordx4 v[200:203], v61, s[64:67], s81 offen
    buffer_load_dword v204, v61, s[64:67], s81 offen offset:16
    v_mul_u32_u24 v62, {10*12288}, v56
    v_lshl_add_u32 v62, v57, 4, v62
    """)
    for t in range(10):
        a(f"s_mov_b32 s80, {t*12288}")
        for j in range(3):
            a(f"buffer_load_dwordx4 {rng(SLOT(t,j))}, v62, s[40:43], s80 offen offset:{128*j} {wpol}")
    a(f"""
    v_mov_b32 v48, 0
    v_mov_b32 v49, 0
    v_mov_b32 v50, 0
    v_mov_b32 v51, 0
    v_mov_b32 v52, -1
    v_mov_b32 v53, -1
    v_mov_b32 v54, -1
    v_mov_b32 v55, -1
    v_lshlrev_b32 v60, 4, v1
    ds_write_b128 v60, v[48:51]
    ds_write_b128 v60, v[48:51] offset:1024
    ds_write_b128 v60, v[48:51] offset:2048
    s_lshl_b32 s80, s2, 10
    s_add_u32 s80, s80, {OP}
    buffer_store_dwordx4 v[52:55], v60, s[36:39], s80 offen sc1
    s_cmp_ge_u32 s2, {NWO + NFF}
    s_cbranch_scc1 L_clr_done
    s_cmp_ge_u32 s2, {NWO}
    s_cbranch_scc1 L_clr_ffn
    s_mul_i32 s80, s83, 2560
    s_lshl_b32 s81, s82, 8
    s_add_u32 s80, s80, s81
    s_add_u32 s80, s80, {YP}
    s_mov_b64 exec, 0xffff
    buffer_store_dwordx4 v[52:55], v60, s[36:39], s80 offen sc1
    s_mov_b64 exec, -1
    s_branch L_clr_done
    L_clr_ffn:
    s_sub_u32 s80, s2, {NWO}
    s_mul_i32 s80, s80, 5120
    s_add_u32 s80, s80, {ZP}
    buffer_store_dwordx4 v[52:55], v60, s[36:39], s80 offen sc1
    buffer_store_dwordx4 v[52:55], v60, s[36:39], s80 offen offset:1024 sc1
    buffer_store_dwordx4 v[52:55], v60, s[36:39], s80 offen offset:2048 sc1
    buffer_store_dwordx4 v[52:55], v60, s[36:39], s80 offen offset:3072 sc1
    s_add_u32 s80, s80, 4096
    buffer_store_dwordx4 v[52:55], v60, s[36:39], s80 offen sc1
    L_clr_done:
    s_waitcnt vmcnt(0)
    """)
    stamp(1)
    unpack(190, 184, 5); unpack(206, 200, 5)
    a("v_add_f32 v60, v190, v191")
    for i in range(2, 10): a(f"v_add_f32 v60, v60, v{190+i}")
    oct_red("v_add_f32", [60]); grp_red("v_add_f32", [60])
    a(f"""v_readlane_b32 s80, v60, 63
    v_mov_b32 v61, 0x3acccccd
    v_mul_f32 v61, s80, v61""")
    for i in range(10): a(f"v_sub_f32 v{190+i}, v{190+i}, v61")
    a("v_mul_f32 v60, v190, v190")
    for i in range(1, 10): a(f"v_fmac_f32 v60, v{190+i}, v{190+i}")
    oct_red("v_add_f32", [60]); grp_red("v_add_f32", [60])
    a(f"""v_readlane_b32 s80, v60, 63
    v_mov_b32 v62, 0x3acccccd
    v_mul_f32 v62, s80, v62""")
    rbf(61, 61); rbf(62, 62)
    a("v_add_f32 v62, 0x3727c5ac, v62"); rbf(62, 62)
    a("v_sqrt_f32 v62, v62"); rbf(62, 62)
    a("v_rcp_f32 v62, v62")
    for i in range(10):
        r = 206 + i
        a(f"v_sub_f32 v{r}, v{r}, v61"); rbf(r, r)
        a(f"v_mul_f32 v{r}, v{r}, v62")
        a(f"v_cvt_pk_bf16_f32 v{r}, v{r}, v{r}")
    for t in range(10):
        b = 48 + 4 * (t & 1)
        bbuild(b, 206 + t)
        for j in range(3): mfma(36 + 4 * j, SLOT(t, j), b, first=(t == 0))
    lds_red([36, 40, 44], L_QACC, 63)
    a(f"""
    v_lshlrev_b32 v60, 4, v1
    s_mul_i32 s80, s2, 768
    s_mov_b32 exec_hi, 0xffff
    s_waitcnt lgkmcnt(0)
    ds_read_b128 v[48:51], v60 offset:{L_QACC}
    s_waitcnt lgkmcnt(0)
    buffer_store_dwordx4 v[48:51], v60, s[36:39], s80 offen sc1
    s_mov_b64 exec, 1
    v_mov_b32 v61, 1
    v_mov_b32 v62, 0
    s_lshl_b32 s81, s82, 3
    s_waitcnt vmcnt(0)
    buffer_atomic_add v61, v62, s[68:71], s81 offen sc1
    s_mov_b64 exec, -1
    v_and_b32 v62, 31, v1
    v_lshlrev_b32 v62, 3, v62
    """)
    stamp(2)
    poll_head()
    a("""buffer_load_dword v61, v62, s[68:71], 0 offen sc1
    s_waitcnt vmcnt(0)
    v_cmp_ne_u32 vcc, 8, v61
    s_nop 4""")
    poll_tail(sleep=8)
    stamp(3)
    a(f"""
    s_mul_i32 s80, s82, 6144
    s_add_u32 s81, s80, 3072
    s_mov_b32 exec_hi, 0xffff
    """)
    for s in range(8):
        a(f"buffer_load_dwordx4 {rng(64+4*s)}, v60, s[36:39], s{80 + s//4} offen offset:{768*(s%4)} sc1")
    a("s_waitcnt vmcnt(0)")
    for s in range(1, 8):
        for r in range(4): a(f"v_add_f32 v{64+r}, v{64+r}, v{64+4*s+r}")
    a(f"""
    v_cvt_pk_bf16_f32 v48, v64, v65
    v_cvt_pk_bf16_f32 v49, v66, v67
    v_lshlrev_b32 v60, 3, v1
    ds_write_b64 v60, v[48:49] offset:{L_QBF}
    s_mov_b64 exec, -1
    """)
    stamp(4)
    for t in range(16): issue_tile(t, 28, 2)
    a("s_waitcnt lgkmcnt(0)")
    a.label("L_bar1")
    for r in range(8, 20): a(f"v_mov_b32 v{r}, 0")
    a("""
    v_bfe_u32 v60, v1, 4, 1
    v_lshlrev_b32 v60, 6, v60
    v_and_b32 v61, 3, v1
    v_lshl_add_u32 v60, v61, 4, v60
    """)
    stamp(5)
    a("s_barrier")
    stamp(6)
    a("s_mov_b64 exec, s[90:91]")
    for j in range(3): a(f"ds_read_b128 {rng(8+4*j)}, v60 offset:{L_QBF + 128*j}")
    a("""s_mov_b64 exec, -1
    s_mov_b32 s84, 0x3d93cd3a
    s_mov_b32 s85, 0x3fb8aa3b
    s_waitcnt lgkmcnt(0)""")
    def qk_reduce(t):
        d = 48 + 4 * (t & 1); s = 20 + t
        a(f"v_mov_b32_dpp v{s}, v{d} quad_perm:[0,0,0,0] {FULL}")
        for r in range(1, 4): a(f"v_add_f32_dpp v{s}, v{d+r}, v{s} quad_perm:[{r},{r},{r},{r}] {FULL}")
        rbf(s, s)
        a(f"v_mul_f32 v{s}, s84, v{s}")
        rbf(s, s)
    for t in range(16):
        a(f"s_waitcnt vmcnt({(15-t)*3 + min(t, P)*3})")
        d = 48 + 4 * (t & 1)
        for j in range(3): mfma(d, SLOT(t, j), 8 + 4 * j, first=(j == 0))
        if t < P: issue_tile(t, 32, 3)
        if t > 0: qk_reduce(t - 1)
    qk_reduce(15)
    a("v_max3_f32 v60, v20, v21, v22")
    for t in range(3, 15, 2): a(f"v_max3_f32 v60, v60, v{20+t}, v{21+t}")
    a("v_max_f32 v60, v60, v35")
    grp_red("v_max_f32", [60])
    a(f"""
    s_lshl_b32 s80, s3, 2
    v_mov_b32 v61, s80
    s_mov_b32 exec_lo, 0
    s_mov_b32 exec_hi, 0x80000000
    ds_write_b32 v61, v60 offset:{L_MW}
    s_mov_b64 exec, -1
    v_mov_b32 v61, 0
    s_waitcnt lgkmcnt(0)
    """)
    stamp(7)
    a(f"""s_barrier
    ds_read_b128 v[48:51], v61 offset:{L_MW}
    ds_read_b128 v[52:55], v61 offset:{L_MW+16}
    s_waitcnt lgkmcnt(0)
    v_max3_f32 v60, v48, v49, v50
    v_max3_f32 v60, v60, v51, v52
    v_max3_f32 v60, v60, v53, v54
    v_max_f32 v60, v60, v55
    """)
    for t in range(16): a(f"v_sub_f32 v{20+t}, v{20+t}, v60")
    for t in range(16): a(f"v_mul_f32 v{20+t}, s85, v{20+t}")
    for t in range(16): a(f"v_exp_f32 v{20+t}, v{20+t}")
    a("v_add_f32 v62, v20, v21")
    for t in range(2, 16): a(f"v_add_f32 v62, v62, v{20+t}")
    grp_red("v_add_f32", [62])
    a(f"""
    s_mov_b32 exec_lo, 0
    s_mov_b32 exec_hi, 0x80000000
    ds_add_f32 v61, v62 offset:{L_OACC + 4*193}
    ds_write_b32 v61, v60 offset:{L_OACC + 4*192}
    s_mov_b64 exec, -1
    """)
    for t in range(16): a(f"v_cvt_pk_bf16_f32 v{20+t}, v{20+t}, v{20+t}")
    stamp(8)
    for t in range(P, 16): issue_tile(t, 32, 3)
    stamp(9)
    def pv(t, extra):
        b = 48 + 4 * (t & 1)
        bbuild(b, 20 + t)
        a(f"s_waitcnt vmcnt({(15-t)*3 + extra})")
        for j in range(3): mfma(36 + 4 * j, SLOT(t, j), b, first=(t == 0))
    for t in range(split): pv(t, 0)
    def finish_attn(extra):
        for t in range(split, 16): pv(t, extra)
        stamp(10)
        lds_red([36, 40, 44], L_OACC, 63)
        a("s_waitcnt lgkmcnt(0)\ns_barrier")
        stamp(11)
    def publish_o(wave):
        n = npoll[0] = npoll[0] + 1
        a(f"""
        s_cmp_lg_u32 s3, {wave}
        s_cbranch_scc1 L_nopub{n}
        v_lshlrev_b32 v60, 4, v1
        s_mov_b32 exec_hi, 0x1ffff
        ds_read_b128 v[48:51], v60 offset:{L_OACC}
        s_lshl_b32 s80, s2, 10
        s_add_u32 s80, s80, {OP}
        s_waitcnt lgkmcnt(0)
        """)
        sanitize(range(48, 52))
        a(f"""buffer_store_dwordx4 v[48:51], v60, s[36:39], s80 offen sc1
        s_mov_b64 exec, -1
        L_nopub{n}:""")
    a(f"""
    s_cmp_lt_u32 s2, {NWO}
    s_cbranch_scc1 L_role_wo
    s_cmp_lt_u32 s2, {NWO+NFF}
    s_cbranch_scc1 L_role_ffn
    """)
    finish_attn(0); publish_o(0)
    stamp(12)
    a("s_branch L_done")

    a.label("L_role_wo")
    a(f"""
    s_and_b32 s83, s2, 7
    s_lshr_b32 s82, s2, 3
    s_lshl_b32 s80, s83, 3
    s_add_u32 s80, s80, s3
    s_mul_i32 s80, s80, {96*1280}
    s_lshl_b32 s81, s82, 7
    s_add_u32 s80, s80, s81
    """)
    srd(40, 12, 80, 7864320)
    a(f"""
    v_mul_u32_u24 v62, {12*1280}, v56
    v_lshl_add_u32 v62, v57, 4, v62
    s_mov_b32 s80, 0
    s_mov_b32 s81, 5120
    s_mov_b32 s86, 10240
    """)
    for t in range(12):
        a(f"buffer_load_dwordx4 {rng(64+4*t)}, v62, s[40:43], s{[80,81,86][t//4]} offen offset:{1280*(t%4)} {wpol}")
    finish_attn(12); publish_o(0)
    a(f"""
    s_lshr_b32 s80, s3, 1
    s_lshl_b32 s81, s83, 2
    s_add_u32 s80, s80, s81
    s_lshl_b32 s80, s80, 13
    s_add_u32 s80, s80, {OP}
    s_and_b32 s81, s3, 1
    s_mul_i32 s81, s81, 384
    s_add_u32 s81, s81, s80
    v_lshlrev_b32 v61, 10, v57
    v_mul_u32_u24 v60, 48, v56
    v_add_u32 v60, v60, v61
    """)
    G = 128
    poll_head()
    for k in range(3): a(f"buffer_load_dwordx4 {rng(G+4*k)}, v60, s[36:39], s81 offen offset:{16*k} sc1")
    a(f"buffer_load_dwordx2 {rng(G+12,2)}, v61, s[36:39], s80 offen offset:768 sc1")
    a("s_waitcnt vmcnt(0)")
    sent_check(range(G, G + 14), 62)
    poll_tail()
    stamp(13)
    m, l = G + 12, G + 13
    a(f"v_mov_b32 v62, v{m}")
    oct_red("v_max_f32", [62])
    a(f"""v_sub_f32 v62, v{m}, v62
    v_mul_f32 v62, s85, v62
    v_exp_f32 v62, v62
    v_mul_f32 v{l}, v{l}, v62""")
    for t in range(12): a(f"v_mul_f32 v{G+t}, v{G+t}, v62")
    oct_red("v_add_f32", [l] + list(range(G, G + 12)))
    a(f"v_rcp_f32 v{l}, v{l}")
    for t in range(12):
        a(f"v_mul_f32 v{G+t}, v{G+t}, v{l}")
    for t in range(12):
        a(f"v_cvt_pk_bf16_f32 v{G+t}, v{G+t}, v{G+t}")
    for t in range(12):
        b = 48 + 4 * (t & 1)
        bbuild(b, G + t)
        mfma(36, 64 + 4 * t, b, first=(t == 0))
    lds_red([36], L_Y, 63)
    a(f"""s_waitcnt lgkmcnt(0)
    s_barrier
    s_cmp_lg_u32 s3, 0
    s_cbranch_scc1 L_done
    v_lshlrev_b32 v60, 4, v1
    s_mov_b64 exec, 0xffff
    ds_read_b128 v[48:51], v60 offset:{L_Y}
    s_mul_i32 s80, s83, 2560
    s_lshl_b32 s81, s82, 8
    s_add_u32 s80, s80, s81
    s_add_u32 s80, s80, {YP}
    s_waitcnt lgkmcnt(0)
    """)
    sanitize(range(48, 52))
    a("""buffer_store_dwordx4 v[48:51], v60, s[36:39], s80 offen sc1
    s_mov_b64 exec, -1""")
    stamp(14)
    a("s_branch L_done")

    a.label("L_role_ffn")
    XR = 8
    a(f"""
    s_sub_u32 s82, s2, {NWO}
    s_mul_i32 s80, s3, {80*3072}
    s_lshl_b32 s81, s82, 7
    s_add_u32 s80, s80, s81
    """)
    srd(40, 16, 80, 1966080); srd(44, 18, 80, 1966080)
    a(f"""
    s_mul_i32 s80, s82, {64*1280}
    s_lshl_b32 s81, s3, 8
    s_add_u32 s80, s80, s81
    """)
    srd(72, 20, 80, 1966080)
    a(f"""
    s_cmp_lt_u32 s3, 5
    s_cselect_b32 s74, s74, 0
    v_mul_u32_u24 v62, {10*3072}, v56
    v_lshl_add_u32 v62, v57, 4, v62
    v_mul_u32_u24 v61, {8*1280}, v56
    v_lshl_add_u32 v61, v57, 4, v61
    v_mul_u32_u24 v60, 20, v56
    s_mul_i32 s81, s3, 160
    buffer_load_dwordx4 v[{XR}:{XR+3}], v60, s[64:67], s81 offen
    buffer_load_dword v{XR+4}, v60, s[64:67], s81 offen offset:16
    """)
    WG_, WU_, WD_ = 64, 104, 144
    for t in range(10):
        a(f"buffer_load_dwordx4 {rng(WG_+4*t)}, v62, s[40:43], s{48+t} offen {wpol}")
        a(f"buffer_load_dwordx4 {rng(WU_+4*t)}, v62, s[44:47], s{48+t} offen {wpol}")
    a("""s_mov_b32 s80, 0
    s_mov_b32 s81, 2560
    s_mov_b32 s86, 5120
    s_mov_b32 s87, 7680""")
    for tt in range(8):
        for jb in range(2):
            a(f"buffer_load_dwordx4 {rng(WD_+8*tt+4*jb)}, v61, s[72:75], s{[80,81,86,87][tt//2]} offen offset:{1280*(tt%2)+128*jb} {wpol}")
    finish_attn(38); publish_o(0)
    G = 208
    a(f"""
    s_mul_i32 s80, s3, 320
    s_add_u32 s80, s80, {YP}
    v_mul_u32_u24 v60, 2560, v57
    v_mul_u32_u24 v61, 40, v56
    v_add_u32 v60, v60, v61
    """)
    poll_head()
    a(f"""buffer_load_dwordx4 {rng(G)}, v60, s[36:39], s80 offen sc1
    buffer_load_dwordx4 {rng(G+4)}, v60, s[36:39], s80 offen offset:16 sc1
    buffer_load_dwordx2 {rng(G+8,2)}, v60, s[36:39], s80 offen offset:32 sc1
    s_waitcnt vmcnt(0)""")
    sent_check(range(G, G + 10), 62)
    poll_tail()
    stamp(13)
    oct_red("v_add_f32", range(G, G + 10))
    X = 20
    unpack(X, XR, 5)
    for t in range(10): rbf(G + t, G + t)
    for t in range(10): a(f"v_add_f32 v{G+t}, v{G+t}, v{X+t}")
    for t in range(10): rbf(G + t, G + t)
    a(f"v_add_f32 v58, v{G}, v{G+1}")
    a(f"v_mul_f32 v59, v{G}, v{G}")
    for t in range(2, 10): a(f"v_add_f32 v58, v58, v{G+t}")
    for t in range(1, 10): a(f"v_fmac_f32 v59, v{G+t}, v{G+t}")
    grp_red("v_add_f32", [58, 59])
    a(f"""
    v_mov_b32 v60, 0
    s_mul_i32 s80, s3, 320
    v_add_u32 v61, s80, v61
    s_mov_b32 exec_lo, 0
    s_mov_b32 exec_hi, 0x80000000
    ds_add_f32 v60, v58 offset:{L_STAT}
    ds_add_f32 v60, v59 offset:{L_STAT+4}
    s_mov_b32 exec_lo, 0x01010101
    s_mov_b32 exec_hi, 0x01010101
    """)
    for k in range(5): a(f"ds_write_b64 v61, {rng(G+2*k,2)} offset:{L_H + 8*k}")
    a(f"""s_mov_b64 exec, -1
    s_waitcnt lgkmcnt(0)
    s_barrier
    ds_read_b64 v[58:59], v60 offset:{L_STAT}
    s_waitcnt lgkmcnt(0)
    v_mul_f32 v58, 0x3acccccd, v58
    v_mul_f32 v59, 0x3acccccd, v59
    v_fma_f32 v59, -v58, v58, v59
    v_max_f32 v59, 0, v59
    """)
    rbf(58, 58); rbf(59, 59)
    a("v_add_f32 v59, 0x3727c5ac, v59"); rbf(59, 59)
    a("v_sqrt_f32 v59, v59"); rbf(59, 59)
    a("v_rcp_f32 v59, v59")
    for t in range(10): a(f"v_sub_f32 v{G+t}, v{G+t}, v58")
    for t in range(10): rbf(G + t, G + t)
    for t in range(10): a(f"v_mul_f32 v{G+t}, v{G+t}, v59")
    for t in range(10): a(f"v_cvt_pk_bf16_f32 v{G+t}, v{G+t}, v{G+t}")
    for t in range(10):
        b = 48 + 4 * (t & 1)
        bbuild(b, G + t)
        mfma(36, WG_ + 4 * t, b, first=(t == 0))
        mfma(40, WU_ + 4 * t, b, first=(t == 0))
    lds_red([36, 40], L_G, 63)
    a(f"""s_waitcnt lgkmcnt(0)
    s_barrier""")
    stamp(14)
    a(f"""
    s_cmp_ge_u32 s3, 5
    s_cbranch_scc1 L_final
    v_lshlrev_b32 v60, 5, v56
    ds_read_b128 {rng(G)}, v60 offset:{L_G}
    ds_read_b128 {rng(G+4)}, v60 offset:{L_G+16}
    ds_read_b128 {rng(G+8)}, v60 offset:{L_U}
    ds_read_b128 {rng(G+12)}, v60 offset:{L_U+16}
    s_waitcnt lgkmcnt(0)
    """)
    for t in range(16): rbf(G + t, G + t)
    for t in range(8): a(f"v_max_f32 v{G+t}, 0, v{G+t}")
    for t in range(8): a(f"v_mul_f32 v{G+t}, v{G+t}, v{G+8+t}")
    for t in range(8): a(f"v_cvt_pk_bf16_f32 v{G+t}, v{G+t}, v{G+t}")
    for tt in range(8):
        b = 48 + 4 * (tt & 1)
        bbuild(b, G + tt)
        for jb in range(2): mfma(36 + 4 * jb, WD_ + 8 * tt + 4 * jb, b, first=(tt == 0))
    a(f"""
    s_mul_i32 s80, s82, 5120
    s_lshl_b32 s81, s3, 9
    s_add_u32 s80, s80, s81
    s_add_u32 s80, s80, {ZP}
    v_lshrrev_b32 v60, 5, v1
    v_mul_u32_u24 v60, 2560, v60
    v_bfe_u32 v61, v1, 4, 1
    v_lshl_add_u32 v61, v61, 3, v57
    v_lshl_add_u32 v60, v61, 4, v60
    """)
    sanitize(range(36, 44))
    a(f"""s_mov_b64 exec, s[90:91]
    buffer_store_dwordx4 v[36:39], v60, s[36:39], s80 offen sc1
    buffer_store_dwordx4 v[40:43], v60, s[36:39], s80 offen offset:256 sc1
    s_mov_b64 exec, -1""")
    stamp(15)
    a("s_branch L_done")
    a.label("L_final")
    a(f"""
    s_cmp_lg_u32 s3, 5
    s_cbranch_scc1 L_done
    s_cmp_ge_u32 s82, 20
    s_cbranch_scc1 L_done
    """)
    srd(76, 22, None, 1280)
    a(f"""
    s_lshl_b32 s80, s82, 7
    s_add_u32 s80, s80, {ZP}
    v_mul_u32_u24 v60, 2560, v57
    v_lshl_add_u32 v60, v56, 4, v60
    v_and_b32 v58, 3, v1
    v_lshl_add_u32 v59, v58, 3, v56
    s_lshl_b32 s81, s82, 5
    v_add_u32 v59, s81, v59
    v_lshlrev_b32 v61, 2, v59
    ds_read_b32 v20, v61 offset:{L_H}
    v_lshlrev_b32 v59, 1, v59
    v_cmp_eq_u32 s[96:97], 1, v58
    v_cmp_eq_u32 s[98:99], 2, v58
    v_cmp_eq_u32 s[100:101], 3, v58
    """)
    for k in range(1, 6): a(f"s_add_u32 s{48+k}, s80, {k*8*2560}")
    a("s_mov_b32 s48, s80")
    poll_head()
    for k in range(6): a(f"buffer_load_dwordx4 {rng(G+4*k)}, v60, s[36:39], s{48+k} offen sc1")
    a("s_waitcnt vmcnt(0)")
    sent_check(range(G, G + 24), 62)
    poll_tail()
    stamp(15)
    for k in range(1, 6):
        for r in range(4): a(f"v_add_f32 v{G+r}, v{G+r}, v{G+4*k+r}")
    oct_red("v_add_f32", range(G, G + 4))
    a(f"""
    v_cndmask_b32 v{G}, v{G}, v{G+1}, s[96:97]
    v_cndmask_b32 v{G}, v{G}, v{G+2}, s[98:99]
    v_cndmask_b32 v{G}, v{G}, v{G+3}, s[100:101]
    s_waitcnt lgkmcnt(0)
    """)
    rbf(G, G)
    a(f"""v_add_f32 v{G}, v{G}, v20
    v_cvt_pk_bf16_f32 v{G}, v{G}, v{G}
    s_mov_b32 exec_lo, 0x0f0f0f0f
    s_mov_b32 exec_hi, 0x0f0f0f0f
    buffer_store_short v{G}, v59, s[76:79], 0 offen
    s_mov_b64 exec, -1
    """)
    stamp(16)
    a.label("L_done")
    if stamps:
        a(f"""
        s_waitcnt vmcnt(0)
        s_memrealtime s[92:93]
        s_getreg_b32 s95, hwreg(HW_REG_XCC_ID)
        s_lshl_b32 s80, s2, 3
        s_add_u32 s80, s80, s3
        s_lshl_b32 s80, s80, 8
        s_add_u32 s80, s80, {ST}
        s_waitcnt lgkmcnt(0)
        v_writelane_b32 v0, s92, 20
        v_writelane_b32 v0, s95, 62
        v_writelane_b32 v0, s94, 61
        v_lshlrev_b32 v60, 2, v1
        buffer_store_dword v0, v60, s[36:39], s80 offen
        """)
    a.label("L_exit")
    a("s_endpgm")
    hdr = HDR + f"""; @launch grid=(256,1,1) block=(512,1,1) lds={LDS_BYTES}
.amdgcn_target "amdgcn-amd-amdhsa--gfx950"
.text
.globl {kname}
.p2align 8
.type {kname},@function
{kname}:
"""
    return hdr + a.render() + kernel_desc(kname, 256)

if __name__ == "__main__":
    out = sys.argv[1]
    kw = json.loads(sys.argv[2]) if len(sys.argv) > 2 else {}
    open(out, "w").write(gen(**kw))
```

```python
import sys, json
from asmlib import *

NAME = "sequential_preLN__mha_block_cached__glu_gated_reglu__decode"
KNAME = NAME + "_kernel"
HDR = open("cdna_kernels/" + NAME + ".s.ref").read().split("; Override launch")[0]

QP = 0x0
OP = 0x40000
YP = 0x80000
ZP = 0x90000
ST = 0x100000
WS_BYTES = 402653184
L_FLAG, L_QBF, L_ML, L_STAT, L_H, L_RED = 0, 64, 448, 512, 576, 3200
RSTR = 1536 + 32
L_RED2 = L_RED + 8 * RSTR + 128
LDS_BYTES = L_RED2 + 8 * RSTR
FULL = "row_mask:0xf bank_mask:0xf"
NWO, NFF = 80, 24
DK, DV = 14, 15

def gen(stamps=False, NS=12, LK=3, LA=2, pol="nt", wpol="nt", spin=1 << 18, th_wo=0, th_ff=0, kname=KNAME, pf=True):
    a = Asm()
    NPOOL = 1024 - 56 * NS
    POOL0 = 56 * NS
    NSP = 15 - NS
    assert LA <= NSP
    SLOT = lambda t, j=0: 64 + 12 * t + 4 * j
    def rng(r, n=4): return f"v[{r}:{r+n-1}]"
    def stamp(i):
        if stamps:
            a(f"""s_memrealtime s[92:93]
            s_waitcnt lgkmcnt(0)
            v_writelane_b32 v0, s92, {i}""")
    def dpp(op, v, ctl, mask=FULL): a(f"{op}_dpp v{v}, v{v}, v{v} {ctl} {mask}")
    def oct_red(op, vs):
        for ctl in ("quad_perm:[1,0,3,2]", "quad_perm:[2,3,0,1]", "row_half_mirror"):
            for v in vs: dpp(op, v, ctl)
    def grp_red(op, vs):
        for v in vs: dpp(op, v, "row_ror:8")
        for v in vs: dpp(op, v, "row_bcast:15", "row_mask:0xa bank_mask:0xf")
        for v in vs: dpp(op, v, "row_bcast:31", "row_mask:0xc bank_mask:0xf")
    def rbf(d, s):
        a(f"v_cvt_pk_bf16_f32 v{d}, v{s}, v{s}")
        a(f"v_and_b32 v{d}, 0xffff0000, v{d}")
    def unpack(dst, src, n):
        for i in range(n):
            a(f"v_lshlrev_b32 v{dst+2*i}, 16, v{src+i}")
            a(f"v_and_b32 v{dst+2*i+1}, 0xffff0000, v{src+i}")
    def bbuild(b, pp):
        for r in range(4): a(f"v_and_b32 v{b+r}, v{pp}, v{4+r}")
    def mfma(d, A, B, first=False):
        a(f"v_mfma_f32_16x16x32_bf16 {rng(d)}, {rng(A)}, {rng(B)}, " + ("0" if first else rng(d)))
    def srd(n, base, off_sgpr, size):
        if off_sgpr is None:
            a(f"""s_mov_b32 s{n}, s{base}
            s_mov_b32 s{n+1}, s{base+1}
            s_mov_b32 s{n+2}, {size}
            s_mov_b32 s{n+3}, 0x20000""")
        else:
            a(f"""s_add_u32 s{n}, s{base}, s{off_sgpr}
            s_addc_u32 s{n+1}, s{base+1}, 0
            s_sub_u32 s{n+2}, {size}, s{off_sgpr}
            s_mov_b32 s{n+3}, 0x20000""")
    def red_write(dregs, base=L_RED):
        a("s_mov_b64 exec, s[90:91]")
        for j, d in enumerate(dregs): a(f"ds_write_b128 v63, {rng(d)} offset:{base + 256*j}")
        a("s_mov_b64 exec, -1")
    def red_read(dst, vaddr, unit, base=L_RED):
        a(f"ds_read_b128 {rng(dst)}, v{vaddr} offset:{base + 128*unit}")
        a(f"ds_read_b128 {rng(dst+4)}, v{vaddr} offset:{base + 768 + 128*unit}")
    def tile_loads(slot, srdn, voff, soff, throttle=None):
        for j in range(3):
            a(f"buffer_load_dwordx4 {rng(SLOT(slot,j))}, v{voff}, s[{srdn}:{srdn+3}], s{soff} offen offset:{128*j} {pol}")
            if throttle is not None: a(f"s_waitcnt vmcnt({throttle})")
    uid = [0]
    def newid():
        uid[0] += 1; return uid[0]
    def poll_head():
        n = newid()
        a(f"s_mov_b32 s94, {spin}")
        a.label(f"L_poll{n}")
        return n
    def poll_tail(n, cond="vccz", sleep=0):
        a(f"s_cbranch_{cond} L_pok{n}")
        if sleep: a(f"s_sleep {sleep}")
        a(f"""s_sub_u32 s94, s94, 1
        s_cmp_lg_u32 s94, 0
        s_cbranch_scc1 L_poll{n}""")
        a.label(f"L_pok{n}")
    def sent_check(regs, tmp):
        regs = list(regs)
        a(f"v_max3_u32 v{tmp}, v{regs[0]}, v{regs[1]}, v{regs[2]}")
        regs = regs[3:]
        while len(regs) >= 2:
            a(f"v_max3_u32 v{tmp}, v{tmp}, v{regs[0]}, v{regs[1]}"); regs = regs[2:]
        if regs: a(f"v_max_u32 v{tmp}, v{tmp}, v{regs[0]}")
        a(f"v_cmp_eq_u32 vcc, -1, v{tmp}")
        a("s_nop 1")
    def sanitize(regs):
        for r in regs: a(f"v_min_u32 v{r}, 0xfffffffe, v{r}")
    def ticket_req():
        a("""s_mov_b32 s88, 1
        s_atomic_add s88, s[86:87], 0 glc""")
    def qk_reduce(d, s):
        a(f"v_mov_b32_dpp v{s}, v{d} quad_perm:[0,0,0,0] {FULL}")
        for r in range(1, 4): a(f"v_add_f32_dpp v{s}, v{d+r}, v{s} quad_perm:[{r},{r},{r},{r}] {FULL}")
        rbf(s, s)
        a(f"v_mul_f32 v{s}, s84, v{s}")
        rbf(s, s)
    def read_qb():
        for r in range(8, 20): a(f"v_mov_b32 v{r}, 0")
        a("""
        v_bfe_u32 v60, v1, 4, 1
        v_lshlrev_b32 v60, 6, v60
        v_and_b32 v61, 3, v1
        v_lshl_add_u32 v60, v61, 4, v60
        s_mov_b64 exec, s[90:91]""")
        for j in range(3): a(f"ds_read_b128 {rng(8+4*j)}, v60 offset:{L_QBF + 128*j}")
        a("s_mov_b64 exec, -1\ns_waitcnt lgkmcnt(0)")

    a(f"""
    s_cmp_ge_u32 s2, 256
    s_cbranch_scc1 L_exit
    s_load_dwordx16 s[4:19], s[0:1], 0
    s_load_dwordx8 s[20:27], s[0:1], 64
    v_lshrrev_b32 v2, 6, v0
    v_and_b32 v1, 63, v0
    v_readfirstlane_b32 s3, v2
    """)
    if stamps: a("s_memrealtime s[92:93]")
    a(f"""
    v_bfe_u32 v2, v1, 2, 2
    v_mul_u32_u24 v2, 768, v2
    v_lshrrev_b32 v3, 5, v1
    v_mul_u32_u24 v3, 384, v3
    v_add_u32 v2, v2, v3
    v_bfe_u32 v3, v1, 4, 1
    v_lshl_add_u32 v2, v3, 6, v2
    v_and_b32 v3, 3, v1
    v_lshl_add_u32 v2, v3, 4, v2
    s_lshr_b32 s82, s2, 3
    s_and_b32 s83, s2, 7
    s_mul_i32 s80, s82, 3145728
    s_mul_i32 s48, s83, {7*NS}
    s_add_u32 s48, s48, s3
    s_sub_u32 s48, s48, 1
    s_mul_i32 s48, s48, 3072
    v_lshrrev_b32 v56, 3, v1
    v_and_b32 v57, 7, v1
    s_cmp_eq_u32 s3, 0
    s_waitcnt lgkmcnt(0)
    """)
    if stamps: a("v_writelane_b32 v0, s92, 0")
    a("s_cbranch_scc1 L_w0a")
    a(f"""s_add_u32 s28, s6, s80
    s_addc_u32 s29, s7, 0
    s_mov_b32 s30, 3145728
    s_mov_b32 s31, 0x20000""")
    tile_loads(0, 28, 2, 48)
    if pf:
        a(f"""s_getpc_b64 s[96:97]
        L_pc:
        s_sub_u32 s81, s3, 1
        s_mul_i32 s81, s81, 3072
        s_add_u32 s96, s96, s81
        s_addc_u32 s97, s97, 0
        v_lshlrev_b32 v60, 4, v1
        v_mov_b32 v61, s97
        v_add_co_u32 v60, vcc, s96, v60
        v_addc_co_u32 v61, vcc, 0, v61, vcc
        global_load_dwordx4 {rng(SLOT(DV,0))}, v[60:61], off
        global_load_dwordx4 {rng(SLOT(DV,1))}, v[60:61], off offset:1024
        global_load_dwordx4 {rng(SLOT(DV,2))}, v[60:61], off offset:2048
        """)
    a("s_branch L_common")
    a.label("L_w0a")
    a(f"""
    s_mul_i32 s81, s83, {80*12288}
    s_mul_i32 s95, s82, 384
    s_add_u32 s81, s81, s95
    """)
    srd(40, 10, 81, 7864320)
    srd(64, 4, None, 1280)
    a(f"""
    v_mul_u32_u24 v60, 20, v1
    v_mul_u32_u24 v61, 20, v56
    s_mul_i32 s81, s83, 160
    v_mul_u32_u24 v62, {10*12288}, v56
    v_lshl_add_u32 v62, v57, 4, v62
    buffer_load_dwordx4 v[184:187], v60, s[64:67], 0 offen
    buffer_load_dword v188, v60, s[64:67], 0 offen offset:16
    buffer_load_dwordx4 v[200:203], v61, s[64:67], s81 offen
    buffer_load_dword v204, v61, s[64:67], s81 offen offset:16
    v_mov_b32 v60, 0
    ds_write_b32 v60, v60 offset:{L_FLAG}
    """)
    for t in range(10):
        a(f"s_mov_b32 s81, {t*12288}")
        for j in range(3):
            a(f"buffer_load_dwordx4 {rng(SLOT(t,j))}, v62, s[40:43], s81 offen offset:{128*j} {wpol}")
    a(f"""s_add_u32 s28, s6, s80
    s_addc_u32 s29, s7, 0
    s_mov_b32 s30, 3145728
    s_mov_b32 s31, 0x20000
    s_waitcnt lgkmcnt(0)""")
    a.label("L_common")
    a("s_barrier")
    a(f"""s_add_u32 s32, s8, s80
    s_addc_u32 s33, s9, 0
    s_mov_b32 s34, 3145728
    s_mov_b32 s35, 0x20000""")
    srd(36, 26, None, WS_BYTES)
    srd(64, 4, None, 1280)
    a(f"""
    s_lshl_b32 s80, s82, 13
    s_add_u32 s80, s80, {OP + 960}
    s_add_u32 s86, s26, s80
    s_addc_u32 s87, s27, 0
    s_lshl_b32 s80, s83, 2
    s_add_u32 s80, s80, s82
    s_and_b32 s80, s80, 31
    s_mov_b32 s89, 0
    s_mov_b32 s50, 0
    s_mov_b32 s51, {NPOOL}
    s_cmp_lt_u32 s80, 13
    s_cbranch_scc0 L_role_set
    s_mov_b32 s89, 1
    s_mov_b32 s50, s80
    s_mov_b32 s51, {NPOOL - th_wo}
    s_cmp_lt_u32 s80, 10
    s_cbranch_scc1 L_role_set
    s_mov_b32 s89, 2
    s_sub_u32 s50, s80, 10
    s_lshl_b32 s50, s50, 3
    s_add_u32 s50, s50, s83
    s_mov_b32 s51, {NPOOL - th_ff}
    L_role_set:
    v_mul_u32_u24 v3, 384, v56
    v_lshl_add_u32 v3, v57, 4, v3
    v_and_b32 v58, 1, v1
    v_mov_b32 v59, 0xffff
    v_lshlrev_b32 v58, 4, v58
    v_lshlrev_b32 v59, v58, v59
    v_lshrrev_b32 v58, 1, v57
    s_mov_b32 s90, 0x00ff00ff
    s_mov_b32 s91, 0xff00ff00
    s_mov_b32 s84, 0x3d93cd3a
    s_mov_b32 s85, 0x3fb8aa3b
    """)
    for r in range(4):
        a(f"v_cmp_eq_u32 vcc, {r}, v58")
        a(f"v_cndmask_b32 v{4+r}, 0, v59, vcc")
    a(f"""
    v_bfe_u32 v63, v1, 4, 1
    v_lshl_add_u32 v63, v63, 3, v57
    v_lshlrev_b32 v63, 4, v63
    v_lshrrev_b32 v58, 5, v1
    v_mul_u32_u24 v58, 768, v58
    s_mul_i32 s80, s3, {RSTR}
    v_add3_u32 v63, v63, v58, s80
    s_cmp_eq_u32 s3, 0
    s_cbranch_scc1 L_w0b
    """)
    q = []
    STEP = 7 * 3072
    for t in range(1, NS):
        a(f"s_add_u32 s49, s48, {t*STEP}")
        tile_loads(t, 28, 2, 49, throttle=LK - 1)
    def vslot(t): return DV if t == NS - 1 else (NS + t if t < NSP else t - NSP)
    def issue_v(t, throttle=None):
        a(f"s_add_u32 s49, s48, {t*STEP}")
        tile_loads(vslot(t), 32, 3, 49, throttle)
        q.append(t)
    issue_v(0, throttle=LK - 1)
    for t in range(1, NSP): issue_v(t)
    stamp(5)
    n = poll_head()
    a(f"""v_mov_b32 v60, 0
    ds_read_b32 v61, v60 offset:{L_FLAG}
    s_waitcnt lgkmcnt(0)
    v_cmp_eq_u32 vcc, 0, v61
    s_nop 1""")
    poll_tail(n, sleep=2)
    stamp(6)
    read_qb()
    a(f"s_waitcnt vmcnt({3*NSP})")
    for t in range(NS):
        d = 48 + 4 * (t & 1)
        for j in range(3): mfma(d, SLOT(t, j), 8 + 4 * j, first=(j == 0))
        if t > 0: qk_reduce(48 + 4 * ((t - 1) & 1), 20 + t - 1)
    qk_reduce(48 + 4 * ((NS - 1) & 1), 20 + NS - 1)
    regs = list(range(20, 20 + NS))
    a(f"v_max_f32 v58, v{regs[0]}, v{regs[1]}")
    rest = regs[2:]
    while len(rest) >= 2:
        a(f"v_max3_f32 v58, v58, v{rest[0]}, v{rest[1]}"); rest = rest[2:]
    if rest: a(f"v_max_f32 v58, v58, v{rest[0]}")
    grp_red("v_max_f32", [58])
    a("v_readlane_b32 s80, v58, 63\nv_mov_b32 v58, s80")
    for r in regs: a(f"v_sub_f32 v{r}, v{r}, v58")
    for r in regs: a(f"v_mul_f32 v{r}, s85, v{r}")
    for r in regs: a(f"v_exp_f32 v{r}, v{r}")
    a(f"v_add_f32 v59, v{regs[0]}, v{regs[1]}")
    for r in regs[2:]: a(f"v_add_f32 v59, v59, v{r}")
    for r in regs: a(f"v_cvt_pk_bf16_f32 v{r}, v{r}, v{r}")
    stamp(7)
    for t in range(NS - 1):
        bbuild(48, 20 + t)
        a(f"s_waitcnt vmcnt({3*(len(q) - 1 - q.index(t))})")
        for j in range(3): mfma(36 + 4 * j, SLOT(vslot(t), j), 48, first=(t == 0))
        if NSP <= t + LA < NS: issue_v(t + LA)
        if t == NS - 3: ticket_req()
    stamp(8)
    a(f"""s_waitcnt lgkmcnt(0)
    s_add_u32 s52, s88, 1
    s_cmp_lt_u32 s52, {NPOOL}
    s_cbranch_scc0 L_st_nok
    s_mul_i32 s49, s52, 3072
    s_add_u32 s49, s49, {POOL0*3072}""")
    tile_loads(DK, 28, 2, 49)
    a.label("L_st_nok")
    bbuild(48, 20 + NS - 1)
    a("s_branch L_after_sm")

    a.label("L_w0b")
    srd(68, 24, None, 256)
    a(f"""
    v_mov_b32 v52, -1
    v_mov_b32 v53, -1
    v_mov_b32 v54, -1
    v_mov_b32 v55, -1
    v_lshlrev_b32 v60, 4, v1
    s_lshl_b32 s80, s2, 10
    s_add_u32 s80, s80, {OP}
    buffer_store_dwordx4 v[52:55], v60, s[36:39], s80 offen sc1
    s_cmp_eq_u32 s89, 0
    s_cbranch_scc1 L_clr_done
    s_cmp_eq_u32 s89, 2
    s_cbranch_scc1 L_clr_ffn
    s_mul_i32 s80, s83, 2560
    s_lshl_b32 s81, s50, 8
    s_add_u32 s80, s80, s81
    s_add_u32 s80, s80, {YP}
    s_mov_b64 exec, 0xffff
    buffer_store_dwordx4 v[52:55], v60, s[36:39], s80 offen sc1
    s_mov_b64 exec, -1
    s_branch L_clr_done
    L_clr_ffn:
    s_mul_i32 s80, s50, 5120
    s_add_u32 s80, s80, {ZP}
    buffer_store_dwordx4 v[52:55], v60, s[36:39], s80 offen sc1
    buffer_store_dwordx4 v[52:55], v60, s[36:39], s80 offen offset:1024 sc1
    buffer_store_dwordx4 v[52:55], v60, s[36:39], s80 offen offset:2048 sc1
    buffer_store_dwordx4 v[52:55], v60, s[36:39], s80 offen offset:3072 sc1
    s_add_u32 s80, s80, 4096
    buffer_store_dwordx4 v[52:55], v60, s[36:39], s80 offen sc1
    L_clr_done:
    s_waitcnt vmcnt(31)
    """)
    unpack(190, 184, 5); unpack(206, 200, 5)
    a("v_add_f32 v60, v190, v191")
    for i in range(2, 10): a(f"v_add_f32 v60, v60, v{190+i}")
    oct_red("v_add_f32", [60]); grp_red("v_add_f32", [60])
    a(f"""v_readlane_b32 s80, v60, 63
    v_mov_b32 v61, 0x3acccccd
    v_mul_f32 v61, s80, v61""")
    for i in range(10): a(f"v_sub_f32 v{190+i}, v{190+i}, v61")
    a("v_mul_f32 v60, v190, v190")
    for i in range(1, 10): a(f"v_fmac_f32 v60, v{190+i}, v{190+i}")
    oct_red("v_add_f32", [60]); grp_red("v_add_f32", [60])
    a(f"""v_readlane_b32 s80, v60, 63
    v_mov_b32 v62, 0x3acccccd
    v_mul_f32 v62, s80, v62""")
    rbf(61, 61); rbf(62, 62)
    a("v_add_f32 v62, 0x3727c5ac, v62"); rbf(62, 62)
    a("v_sqrt_f32 v62, v62"); rbf(62, 62)
    a("v_rcp_f32 v62, v62")
    for i in range(10):
        r = 206 + i
        a(f"v_sub_f32 v{r}, v{r}, v61"); rbf(r, r)
        a(f"v_mul_f32 v{r}, v{r}, v62")
        a(f"v_cvt_pk_bf16_f32 v{r}, v{r}, v{r}")
    a("s_waitcnt vmcnt(1)")
    stamp(1)
    for t in range(10):
        b = 48 + 4 * (t & 1)
        bbuild(b, 206 + t)
        for j in range(3): mfma(36 + 4 * j, SLOT(t, j), b, first=(t == 0))
    red_write([36, 40, 44])
    a(f"""
    v_lshlrev_b32 v60, 4, v1
    s_mul_i32 s80, s2, 768
    s_mov_b32 exec_hi, 0xffff
    s_waitcnt lgkmcnt(0)
    ds_read_b128 v[48:51], v60 offset:{L_RED}
    ds_read_b128 v[52:55], v60 offset:{L_RED + 768}
    s_waitcnt lgkmcnt(0)
    v_add_f32 v48, v48, v52
    v_add_f32 v49, v49, v53
    v_add_f32 v50, v50, v54
    v_add_f32 v51, v51, v55
    buffer_store_dwordx4 v[48:51], v60, s[36:39], s80 offen sc1
    s_lshl_b32 s80, s82, 3
    s_add_u32 s96, s24, s80
    s_addc_u32 s97, s25, 0
    s_mov_b32 s88, 1
    s_sub_u32 s98, s86, {960 - 896}
    s_subb_u32 s99, s87, 0
    s_waitcnt vmcnt(0)
    s_atomic_add s88, s[96:97], 0 glc
    s_waitcnt lgkmcnt(0)
    """)
    stamp(2)
    a(f"""
    s_and_b32 s88, s88, 7
    s_cmp_eq_u32 s88, 7
    s_cbranch_scc0 L_wait_go
    s_mov_b32 s95, 1
    """)
    for s in range(8): a(f"s_atomic_add s95, s[98:99], {1024*s}")
    a("""s_branch L_go
    L_wait_go:
    s_lshl_b32 s80, s83, 10
    s_add_u32 s98, s98, s80
    s_addc_u32 s99, s99, 0""")
    n = poll_head()
    a("""s_load_dword s88, s[98:99], 0 glc
    s_waitcnt lgkmcnt(0)
    s_cmp_lg_u32 s88, -1""")
    poll_tail(n, cond="scc1", sleep=1)
    a.label("L_go")
    stamp(3)
    a(f"""
    s_mul_i32 s80, s82, 6144
    s_add_u32 s81, s80, 3072
    """)
    for s in range(8):
        a(f"buffer_load_dwordx4 {rng(64+4*s)}, v60, s[36:39], s{80 + s//4} offen offset:{768*(s%4)} sc1")
    ticket_req()
    a(f"""v_lshlrev_b32 v61, 6, v56
    v_lshl_add_u32 v61, v57, 1, v61
    s_waitcnt vmcnt(0)""")
    for s in range(1, 8):
        for r in range(4): a(f"v_add_f32 v{64+r}, v{64+r}, v{64+4*s+r}")
    a(f"""
    v_cvt_pk_bf16_f32 v48, v64, v65
    v_cvt_pk_bf16_f32 v49, v66, v67
    ds_write_b16 v61, v48 offset:{L_QBF}
    ds_write_b16_d16_hi v61, v48 offset:{L_QBF + 16}
    ds_write_b16 v61, v49 offset:{L_QBF + 32}
    ds_write_b16_d16_hi v61, v49 offset:{L_QBF + 48}
    s_mov_b64 exec, -1
    v_mov_b32 v60, 0
    v_mov_b32 v61, 1
    s_waitcnt lgkmcnt(0)
    ds_write_b32 v60, v61 offset:{L_FLAG}
    """)
    stamp(4)
    a(f"""s_cmp_eq_u32 s89, 0
    s_cbranch_scc1 L_w0c
    v_and_b32 v62, 31, v1
    v_lshlrev_b32 v62, 3, v62""")
    n = poll_head()
    a("""buffer_load_dword v61, v62, s[68:71], 0 offen sc1
    s_waitcnt vmcnt(0)
    v_cmp_gt_u32 vcc, 8, v61
    s_nop 1""")
    poll_tail(n, sleep=16)
    a.label("L_w0c")
    a(f"""s_add_u32 s52, s88, 1
    s_cmp_lt_u32 s52, {NPOOL}
    s_cbranch_scc0 L_w0_nok
    s_mul_i32 s49, s52, 3072
    s_add_u32 s49, s49, {POOL0*3072}""")
    tile_loads(DK, 28, 2, 49)
    a.label("L_w0_nok")
    read_qb()
    for r in list(range(36, 52)) + list(range(SLOT(DV), SLOT(DV) + 12)) + [59]: a(f"v_mov_b32 v{r}, 0")
    a("v_mov_b32 v58, 0xff7fffff")
    a("s_branch L_after_sm")

    a.label("L_rescale")
    a("v_mov_b32 v60, v20")
    grp_red("v_max_f32", [60])
    a(f"""v_readlane_b32 s80, v60, 63
    v_sub_f32 v60, v58, s80
    v_mul_f32 v60, s85, v60
    v_exp_f32 v60, v60
    v_mov_b32 v58, s80""")
    for r in list(range(36, 48)) + [59]: a(f"v_mul_f32 v{r}, v{r}, v60")
    a("s_branch L_back")
    a(".p2align 6")
    a.label("L_top")
    a("s_waitcnt vmcnt(3) lgkmcnt(0)")
    for j in range(3): mfma(52, SLOT(DK, j), 8 + 4 * j, first=(j == 0))
    a(f"""s_add_u32 s52, s88, 1
    s_cmp_lt_u32 s52, {NPOOL}
    s_cbranch_scc0 L_skipk
    s_mul_i32 s49, s52, 3072
    s_add_u32 s49, s49, {POOL0*3072}""")
    tile_loads(DK, 28, 2, 49)
    a.label("L_skipk")
    a("s_nop 7")
    qk_reduce(52, 20)
    a("""v_cmp_gt_f32 vcc, v20, v58
    s_nop 1
    s_cbranch_vccnz L_rescale""")
    a.label("L_back")
    a("""v_sub_f32 v20, v20, v58
    v_mul_f32 v20, s85, v20
    v_exp_f32 v20, v20
    s_nop 0
    v_add_f32 v59, v59, v20
    v_cvt_pk_bf16_f32 v20, v20, v20""")
    bbuild(48, 20)
    a.label("L_after_sm")
    a(f"""s_cmp_lt_u32 s52, {NPOOL}
    s_cbranch_scc0 L_last
    s_waitcnt vmcnt(3)""")
    for j in range(3): mfma(36 + 4 * j, SLOT(DV, j), 48)
    tile_loads(DV, 32, 3, 49)
    if stamps: a("s_add_u32 s53, s53, 1")
    a(f"""s_mov_b32 s88, {NPOOL}
    s_cmp_lt_u32 s52, s51
    s_cbranch_scc0 L_top""")
    ticket_req()
    a("s_branch L_top")

    a.label("L_last")
    stamp(9)
    a(f"""s_cmp_eq_u32 s89, 1
    s_cbranch_scc1 L_role_wo
    s_cmp_eq_u32 s89, 2
    s_cbranch_scc1 L_role_ffn""")
    def finish_attn(extra):
        grp_red("v_add_f32", [59])
        a(f"""s_lshl_b32 s80, s3, 3
        v_mov_b32 v61, s80
        s_mov_b32 exec_lo, 0
        s_mov_b32 exec_hi, 0x80000000
        ds_write_b64 v61, v[58:59] offset:{L_ML}
        s_mov_b64 exec, -1
        v_mul_u32_u24 v60, {RSTR}, v57
        v_lshl_add_u32 v2, v56, 4, v60
        s_lshl_b32 s80, s3, 7
        v_add_u32 v60, s80, v2
        v_lshlrev_b32 v61, 3, v57
        s_lshl_b32 s81, s2, 10
        s_add_u32 s81, s81, {OP}
        s_add_u32 s80, s80, s81
        v_lshlrev_b32 v62, 4, v56
        s_waitcnt vmcnt({extra})""")
        for j in range(3): mfma(36 + 4 * j, SLOT(DV, j), 48)
        stamp(10)
        red_write([36, 40, 44])
        a("s_waitcnt lgkmcnt(0)\ns_barrier")
        stamp(11)
        n = newid()
        a(f"""s_cmp_eq_u32 s3, 7
        s_cbranch_scc1 L_nopub{n}
        ds_read_b64 v[58:59], v61 offset:{L_ML}""")
        red_read(48, 60, 0)
        a("s_waitcnt lgkmcnt(2)\nv_mov_b32 v20, v58")
        oct_red("v_max_f32", [20])
        a(f"""v_sub_f32 v21, v58, v20
        v_mul_f32 v21, s85, v21
        v_exp_f32 v21, v21
        s_cmp_eq_u32 s3, 6
        s_waitcnt lgkmcnt(0)
        s_cbranch_scc1 L_pubml{n}""")
        for r in range(4): a(f"v_add_f32 v{48+r}, v{48+r}, v{52+r}")
        for r in range(4): a(f"v_mul_f32 v{48+r}, v{48+r}, v21")
        oct_red("v_add_f32", range(48, 52))
        sanitize(range(48, 52))
        a(f"""s_mov_b32 exec_lo, 0x01010101
        s_mov_b32 exec_hi, 0x01010101
        buffer_store_dwordx4 v[48:51], v62, s[36:39], s80 offen sc1
        s_mov_b64 exec, -1
        s_branch L_nopub{n}
        L_pubml{n}:
        v_mul_f32 v21, v21, v59""")
        oct_red("v_add_f32", [21])
        sanitize([20, 21])
        a(f"""s_mov_b64 exec, 1
        buffer_store_dwordx2 v[20:21], v62, s[36:39], s80 offen sc1
        s_mov_b64 exec, -1
        L_nopub{n}:""")
        stamp(12)
    finish_attn(0)
    a("s_branch L_done")

    a.label("L_role_wo")
    a(f"""
    s_lshl_b32 s80, s83, 3
    s_add_u32 s80, s80, s3
    s_mul_i32 s80, s80, {96*1280}
    s_lshl_b32 s81, s50, 7
    s_add_u32 s80, s80, s81
    """)
    srd(40, 12, 80, 7864320)
    a(f"""
    v_mul_u32_u24 v62, 1280, v56
    v_lshl_add_u32 v62, v57, 4, v62
    """)
    for t in range(12):
        a(f"s_mov_b32 s80, {t*8*1280}")
        a(f"buffer_load_dwordx4 {rng(64+4*t)}, v62, s[40:43], s80 offen {wpol}")
    finish_attn(12)
    a(f"""
    s_lshr_b32 s80, s3, 1
    s_lshl_b32 s81, s83, 2
    s_add_u32 s80, s80, s81
    s_lshl_b32 s80, s80, 13
    s_add_u32 s80, s80, {OP}
    s_and_b32 s81, s3, 1
    s_mul_i32 s81, s81, 384
    s_add_u32 s81, s81, s80
    v_lshlrev_b32 v61, 10, v57
    v_lshl_add_u32 v60, v56, 4, v61
    """)
    G = 128
    n = poll_head()
    for k in range(3): a(f"buffer_load_dwordx4 {rng(G+4*k)}, v60, s[36:39], s81 offen offset:{128*k} sc1")
    a(f"buffer_load_dwordx2 {rng(G+12,2)}, v61, s[36:39], s80 offen offset:768 sc1")
    a("s_waitcnt vmcnt(0)")
    sent_check(range(G, G + 14), 62)
    poll_tail(n)
    stamp(13)
    m, l = G + 12, G + 13
    a(f"v_mov_b32 v62, v{m}")
    oct_red("v_max_f32", [62])
    a(f"""v_sub_f32 v62, v{m}, v62
    v_mul_f32 v62, s85, v62
    v_exp_f32 v62, v62
    v_mul_f32 v{l}, v{l}, v62""")
    for t in range(12): a(f"v_mul_f32 v{G+t}, v{G+t}, v62")
    oct_red("v_add_f32", [l] + list(range(G, G + 12)))
    a(f"v_rcp_f32 v{l}, v{l}")
    for t in range(12):
        a(f"v_mul_f32 v{G+t}, v{G+t}, v{l}")
        a(f"v_cvt_pk_bf16_f32 v{G+t}, v{G+t}, v{G+t}")
        b = 48 + 4 * (t & 1)
        bbuild(b, G + t)
        mfma(36, 64 + 4 * t, b, first=(t == 0))
    red_write([36], L_RED2)
    a(f"""s_waitcnt lgkmcnt(0)
    s_barrier
    s_cmp_ge_u32 s3, 2
    s_cbranch_scc1 L_done
    s_lshl_b32 s80, s3, 7
    v_add_u32 v60, s80, v2""")
    red_read(48, 60, 0, L_RED2)
    a(f"""s_mul_i32 s81, s83, 2560
    s_add_u32 s80, s80, s81
    s_lshl_b32 s81, s50, 8
    s_add_u32 s80, s80, s81
    s_add_u32 s80, s80, {YP}
    v_lshlrev_b32 v62, 4, v56
    s_waitcnt lgkmcnt(0)""")
    for r in range(4): a(f"v_add_f32 v{48+r}, v{48+r}, v{52+r}")
    oct_red("v_add_f32", range(48, 52))
    sanitize(range(48, 52))
    a("""s_mov_b32 exec_lo, 0x01010101
    s_mov_b32 exec_hi, 0x01010101
    buffer_store_dwordx4 v[48:51], v62, s[36:39], s80 offen sc1
    s_mov_b64 exec, -1""")
    stamp(14)
    a("s_branch L_done")

    a.label("L_role_ffn")
    X = 8
    a(f"""
    s_mul_i32 s80, s3, {80*3072}
    s_lshl_b32 s81, s50, 7
    s_add_u32 s80, s80, s81
    """)
    srd(40, 16, 80, 1966080); srd(44, 18, 80, 1966080)
    a(f"""
    s_mul_i32 s80, s50, {64*1280}
    s_lshl_b32 s81, s3, 8
    s_add_u32 s80, s80, s81
    """)
    srd(72, 20, 80, 1966080)
    a(f"""
    s_cmp_lt_u32 s3, 5
    s_cselect_b32 s74, s74, 0
    v_mul_u32_u24 v62, 3072, v56
    v_lshl_add_u32 v62, v57, 4, v62
    v_mul_u32_u24 v61, 1280, v56
    v_lshl_add_u32 v61, v57, 4, v61
    v_lshlrev_b32 v60, 1, v56
    s_mul_i32 s81, s3, 160
    """)
    for t in range(10): a(f"buffer_load_ushort v{X+t}, v60, s[64:67], s81 offen offset:{16*t}")
    WG_, WU_, WD_ = 64, 104, 144
    for t in range(10):
        a(f"s_mov_b32 s80, {t*8*3072}")
        a(f"buffer_load_dwordx4 {rng(WG_+4*t)}, v62, s[40:43], s80 offen {wpol}")
        a(f"buffer_load_dwordx4 {rng(WU_+4*t)}, v62, s[44:47], s80 offen {wpol}")
    for tt in range(8):
        a(f"s_mov_b32 s80, {tt*8*1280}")
        for jb in range(2):
            a(f"buffer_load_dwordx4 {rng(WD_+8*tt+4*jb)}, v61, s[72:75], s80 offen offset:{128*jb} {wpol}")
    finish_attn(46)
    G = 208
    a(f"""
    v_mul_u32_u24 v60, 2560, v57
    v_lshl_add_u32 v60, v56, 4, v60
    """)
    for k in range(5):
        a(f"""s_mul_i32 s80, s3, 5
        s_add_u32 s80, s80, {k}
        s_lshr_b32 s81, s80, 1
        s_lshl_b32 s81, s81, 7
        s_and_b32 s80, s80, 1
        s_lshl_b32 s80, s80, 3
        s_add_u32 s80, s80, s81
        s_add_u32 s{54+k}, s80, {YP}""")
    n = poll_head()
    for k in range(5): a(f"buffer_load_dwordx2 {rng(G+2*k,2)}, v60, s[36:39], s{54+k} offen sc1")
    a("s_waitcnt vmcnt(0)")
    sent_check(range(G, G + 10), 62)
    poll_tail(n)
    stamp(13)
    oct_red("v_add_f32", range(G, G + 10))
    for t in range(10): a(f"v_lshlrev_b32 v{X+t}, 16, v{X+t}")
    for t in range(10): rbf(G + t, G + t)
    for t in range(10): a(f"v_add_f32 v{G+t}, v{G+t}, v{X+t}")
    for t in range(10): rbf(G + t, G + t)
    a(f"v_add_f32 v58, v{G}, v{G+1}")
    a(f"v_mul_f32 v59, v{G}, v{G}")
    for t in range(2, 10): a(f"v_add_f32 v58, v58, v{G+t}")
    for t in range(1, 10): a(f"v_fmac_f32 v59, v{G+t}, v{G+t}")
    grp_red("v_add_f32", [58, 59])
    a(f"""
    s_lshl_b32 s80, s3, 3
    v_mov_b32 v60, s80
    s_mul_i32 s80, s3, 320
    v_lshl_add_u32 v61, v56, 2, s80
    s_mov_b32 exec_lo, 0
    s_mov_b32 exec_hi, 0x80000000
    ds_write_b64 v60, v[58:59] offset:{L_STAT}
    s_mov_b32 exec_lo, 0x01010101
    s_mov_b32 exec_hi, 0x01010101
    """)
    for k in range(5): a(f"ds_write2_b32 v61, v{G+2*k}, v{G+2*k+1} offset0:{L_H//4 + 16*k} offset1:{L_H//4 + 16*k + 8}")
    a(f"""s_mov_b64 exec, -1
    v_lshlrev_b32 v60, 3, v57
    s_waitcnt lgkmcnt(0)
    s_barrier
    ds_read_b64 v[58:59], v60 offset:{L_STAT}
    s_waitcnt lgkmcnt(0)""")
    oct_red("v_add_f32", [58, 59])
    a(f"""v_mul_f32 v58, 0x3acccccd, v58
    v_mul_f32 v59, 0x3acccccd, v59
    v_fma_f32 v59, -v58, v58, v59
    v_max_f32 v59, 0, v59
    """)
    rbf(58, 58); rbf(59, 59)
    a("v_add_f32 v59, 0x3727c5ac, v59"); rbf(59, 59)
    a("v_sqrt_f32 v59, v59"); rbf(59, 59)
    a("v_rcp_f32 v59, v59")
    for t in range(10): a(f"v_sub_f32 v{G+t}, v{G+t}, v58")
    for t in range(10): rbf(G + t, G + t)
    for t in range(10):
        a(f"v_mul_f32 v{G+t}, v{G+t}, v59")
        a(f"v_cvt_pk_bf16_f32 v{G+t}, v{G+t}, v{G+t}")
        b = 48 + 4 * (t & 1)
        bbuild(b, G + t)
        mfma(36, WG_ + 4 * t, b, first=(t == 0))
        mfma(40, WU_ + 4 * t, b, first=(t == 0))
    red_write([36, 40])
    a(f"""s_waitcnt lgkmcnt(0)
    s_barrier""")
    stamp(14)
    a(f"""
    s_cmp_ge_u32 s3, 5
    s_cbranch_scc1 L_final""")
    for u in range(4): red_read(G + 8 * u, 2, u)
    a("s_waitcnt lgkmcnt(0)")
    vals = []
    for u in range(4):
        for r in range(4):
            a(f"v_add_f32 v{G+8*u+r}, v{G+8*u+r}, v{G+8*u+4+r}"); vals.append(G + 8 * u + r)
    oct_red("v_add_f32", vals)
    for v in vals: rbf(v, v)
    for tt in range(8):
        g_, u_ = vals[tt], vals[8 + tt]
        a(f"v_max_f32 v{g_}, 0, v{g_}")
        a(f"v_mul_f32 v{g_}, v{g_}, v{u_}")
        a(f"v_cvt_pk_bf16_f32 v{g_}, v{g_}, v{g_}")
        b = 48 + 4 * (tt & 1)
        bbuild(b, g_)
        for jb in range(2): mfma(36 + 4 * jb, WD_ + 8 * tt + 4 * jb, b, first=(tt == 0))
    a(f"""
    s_mul_i32 s80, s50, 5120
    s_lshl_b32 s81, s3, 9
    s_add_u32 s80, s80, s81
    s_add_u32 s80, s80, {ZP}
    v_lshrrev_b32 v60, 5, v1
    v_mul_u32_u24 v60, 2560, v60
    v_bfe_u32 v61, v1, 4, 1
    v_lshl_add_u32 v61, v61, 3, v57
    v_lshl_add_u32 v60, v61, 4, v60
    """)
    sanitize(range(36, 44))
    a(f"""s_mov_b64 exec, s[90:91]
    buffer_store_dwordx4 v[36:39], v60, s[36:39], s80 offen sc1
    buffer_store_dwordx4 v[40:43], v60, s[36:39], s80 offen offset:256 sc1
    s_mov_b64 exec, -1""")
    stamp(15)
    a("s_branch L_done")
    a.label("L_final")
    a(f"""
    s_cmp_lg_u32 s3, 5
    s_cbranch_scc1 L_done
    s_cmp_ge_u32 s50, 20
    s_cbranch_scc1 L_done
    """)
    srd(76, 22, None, 1280)
    a(f"""
    s_lshl_b32 s80, s50, 7
    s_add_u32 s80, s80, {ZP}
    v_mul_u32_u24 v60, 2560, v57
    v_lshl_add_u32 v60, v56, 4, v60
    v_and_b32 v58, 3, v1
    v_lshl_add_u32 v59, v58, 3, v56
    s_lshl_b32 s81, s50, 5
    v_add_u32 v59, s81, v59
    v_lshlrev_b32 v61, 2, v59
    ds_read_b32 v20, v61 offset:{L_H}
    v_lshlrev_b32 v59, 1, v59
    v_cmp_eq_u32 s[96:97], 1, v58
    v_cmp_eq_u32 s[98:99], 2, v58
    v_cmp_eq_u32 s[100:101], 3, v58
    """)
    for k in range(6): a(f"s_add_u32 s{54+k}, s80, {k*8*2560}")
    n = poll_head()
    for k in range(6): a(f"buffer_load_dwordx4 {rng(G+4*k)}, v60, s[36:39], s{54+k} offen sc1")
    a("s_waitcnt vmcnt(0)")
    sent_check(range(G, G + 24), 62)
    poll_tail(n)
    stamp(16)
    for k in range(1, 6):
        for r in range(4): a(f"v_add_f32 v{G+r}, v{G+r}, v{G+4*k+r}")
    oct_red("v_add_f32", range(G, G + 4))
    a(f"""
    v_cndmask_b32 v{G}, v{G}, v{G+1}, s[96:97]
    v_cndmask_b32 v{G}, v{G}, v{G+2}, s[98:99]
    v_cndmask_b32 v{G}, v{G}, v{G+3}, s[100:101]
    s_waitcnt lgkmcnt(0)
    """)
    rbf(G, G)
    a(f"""v_add_f32 v{G}, v{G}, v20
    v_cvt_pk_bf16_f32 v{G}, v{G}, v{G}
    s_mov_b32 exec_lo, 0x0f0f0f0f
    s_mov_b32 exec_hi, 0x0f0f0f0f
    buffer_store_short v{G}, v59, s[76:79], 0 offen
    s_mov_b64 exec, -1
    """)
    stamp(17)
    a.label("L_done")
    if stamps:
        a(f"""
        s_waitcnt vmcnt(0)
        s_memrealtime s[92:93]
        s_getreg_b32 s95, hwreg(HW_REG_XCC_ID)
        s_lshl_b32 s80, s2, 3
        s_add_u32 s80, s80, s3
        s_lshl_b32 s80, s80, 8
        s_add_u32 s80, s80, {ST}
        s_waitcnt lgkmcnt(0)
        v_writelane_b32 v0, s92, 20
        v_writelane_b32 v0, s95, 62
        v_writelane_b32 v0, s89, 61
        v_writelane_b32 v0, s53, 60
        v_lshlrev_b32 v60, 2, v1
        buffer_store_dword v0, v60, s[36:39], s80 offen
        """)
    a.label("L_exit")
    a("s_endpgm")
    a(".fill 4096, 4, 0xbf810000" if pf else "")
    body = a.render()
    if stamps: body = body.replace("    s_lshr_b32 s82, s2, 3\n", "    s_lshr_b32 s82, s2, 3\n    s_mov_b32 s53, 0\n", 1)
    hdr = HDR + f"""; @launch grid=(256,1,1) block=(512,1,1) lds={LDS_BYTES}
.amdgcn_target "amdgcn-amd-amdhsa--gfx950"
.text
.globl {kname}
.p2align 8
.type {kname},@function
{kname}:
"""
    return hdr + body + kernel_desc(kname, 256)

if __name__ == "__main__":
    out = sys.argv[1]
    kw = json.loads(sys.argv[2]) if len(sys.argv) > 2 else {}
    open(out, "w").write(gen(**kw))
```

```python
import sys, json
from asmlib import *

NAME = "sequential_preLN__mha_block_cached__glu_gated_reglu__decode"
KNAME = NAME + "_kernel"
HDR = open("cdna_kernels/" + NAME + ".s.ref").read().split("; Override launch")[0]

QP = 0x0
OP = 0x40000
YP = 0x80000
ZP = 0x90000
ST = 0x100000
WS_BYTES = 402653184
L_FLAG, L_QBF, L_ML, L_STAT, L_H, L_RED = 0, 64, 448, 512, 576, 3200
RSTR = 1536 + 32
L_RED2 = L_RED + 8 * RSTR + 256
L_CS = 16384
L_GU = L_CS + 4096
LDS_BYTES = 32768
assert L_RED2 + 8 * RSTR <= LDS_BYTES and L_RED + 8 * RSTR + 256 <= L_CS
FULL = "row_mask:0xf bank_mask:0xf"
NWO, NFF = 80, 24
DK, DV = 14, 15

def gen(stamps=False, NS=12, LK=3, LA=2, pol="nt", wpol="nt", spin=1 << 18, th_wo=0, th_ff=0, wo_late=0, dn_late=0, kname=KNAME, pf=1, prof=False, NB=2, LW=None, rot=0, early_tk=False, fake_tk=False, noburst=False):
    a = Asm()
    NPOOL = 1024 - 56 * NS
    POOL0 = 56 * NS
    NSP = 15 - NS
    if rot:
        POOLOFF = f"""s_add_u32 s49, s52, s59
        s_sub_u32 s95, s49, {NPOOL}
        s_min_u32 s49, s49, s95
        s_mul_i32 s49, s49, 3072
        s_add_u32 s49, s49, {POOL0*3072}"""
    else:
        POOLOFF = f"""s_mul_i32 s49, s52, 3072
        s_add_u32 s49, s49, {POOL0*3072}"""
    assert LA <= NSP <= NS - 1
    SLOT = lambda t, j=0: 64 + 12 * t + 4 * j
    def rng(r, n=4): return f"v[{r}:{r+n-1}]"
    def stamp(i):
        if stamps:
            a(f"""s_memrealtime s[92:93]
            s_waitcnt lgkmcnt(0)
            v_writelane_b32 v0, s92, {i}""")
    def pstamp(i):
        if prof:
            a(f"""s_memrealtime s[92:93]
            s_waitcnt lgkmcnt(0)""")
            if i is None: a("s_add_u32 s95, s53, 30\ns_min_u32 s95, s95, 63\ns_mov_b32 m0, s95\nv_writelane_b32 v33, s92, m0")
            else: a(f"v_writelane_b32 v33, s92, {i}")
    def dpp(op, v, ctl, mask=FULL): a(f"{op}_dpp v{v}, v{v}, v{v} {ctl} {mask}")
    def oct_red(op, vs):
        for ctl in ("quad_perm:[1,0,3,2]", "quad_perm:[2,3,0,1]", "row_half_mirror"):
            for v in vs: dpp(op, v, ctl)
    def grp_red(op, vs):
        for v in vs: dpp(op, v, "row_ror:8")
        for v in vs: dpp(op, v, "row_bcast:15", "row_mask:0xa bank_mask:0xf")
        for v in vs: dpp(op, v, "row_bcast:31", "row_mask:0xc bank_mask:0xf")
    def rbf(d, s):
        a(f"v_cvt_pk_bf16_f32 v{d}, v{s}, v{s}")
        a(f"v_and_b32 v{d}, 0xffff0000, v{d}")
    def unpack(dst, src, n):
        for i in range(n):
            a(f"v_lshlrev_b32 v{dst+2*i}, 16, v{src+i}")
            a(f"v_and_b32 v{dst+2*i+1}, 0xffff0000, v{src+i}")
    def bbuild(b, pp):
        for r in range(4): a(f"v_and_b32 v{b+r}, v{pp}, v{4+r}")
    def mfma(d, A, B, first=False):
        a(f"v_mfma_f32_16x16x32_bf16 {rng(d)}, {rng(A)}, {rng(B)}, " + ("0" if first else rng(d)))
    def srd(n, base, off_sgpr, size):
        if off_sgpr is None:
            a(f"""s_mov_b32 s{n}, s{base}
            s_mov_b32 s{n+1}, s{base+1}
            s_mov_b32 s{n+2}, {size}
            s_mov_b32 s{n+3}, 0x20000""")
        else:
            a(f"""s_add_u32 s{n}, s{base}, s{off_sgpr}
            s_addc_u32 s{n+1}, s{base+1}, 0
            s_sub_u32 s{n+2}, {size}, s{off_sgpr}
            s_mov_b32 s{n+3}, 0x20000""")
    def red_write(dregs, base=L_RED):
        a("s_mov_b64 exec, s[90:91]")
        for j, d in enumerate(dregs): a(f"ds_write_b128 v63, {rng(d)} offset:{base + 256*j}")
        a("s_mov_b64 exec, -1")
    def red_read(dst, vaddr, unit, base=L_RED):
        a(f"ds_read_b128 {rng(dst)}, v{vaddr} offset:{base + 128*unit}")
        a(f"ds_read_b128 {rng(dst+4)}, v{vaddr} offset:{base + 768 + 128*unit}")
    def tile_loads(slot, srdn, voff, soff, throttle=None):
        for j in range(3):
            a(f"buffer_load_dwordx4 {rng(SLOT(slot,j))}, v{voff}, s[{srdn}:{srdn+3}], s{soff} offen offset:{128*j} {pol}")
            if throttle is not None: a(f"s_waitcnt vmcnt({throttle})")
    uid = [0]
    def newid():
        uid[0] += 1; return uid[0]
    def poll_head():
        n = newid()
        a(f"s_mov_b32 s94, {spin}")
        a.label(f"L_poll{n}")
        return n
    def poll_tail(n, cond="vccz", sleep=0):
        a(f"s_cbranch_{cond} L_pok{n}")
        if sleep: a(f"s_sleep {sleep}")
        a(f"""s_sub_u32 s94, s94, 1
        s_cmp_lg_u32 s94, 0
        s_cbranch_scc1 L_poll{n}""")
        a.label(f"L_pok{n}")
    def sent_check(regs, tmp):
        regs = list(regs)
        a(f"v_max3_u32 v{tmp}, v{regs[0]}, v{regs[1]}, v{regs[2]}")
        regs = regs[3:]
        while len(regs) >= 2:
            a(f"v_max3_u32 v{tmp}, v{tmp}, v{regs[0]}, v{regs[1]}"); regs = regs[2:]
        if regs: a(f"v_max_u32 v{tmp}, v{tmp}, v{regs[0]}")
        a(f"v_cmp_eq_u32 vcc, -1, v{tmp}")
        a("s_nop 1")
    def sanitize(regs):
        for r in regs: a(f"v_min_u32 v{r}, 0xfffffffe, v{r}")
    def ticket_req():
        if fake_tk:
            a("""s_mov_b32 s88, s60
            s_add_u32 s60, s60, 64""")
            return
        a("""s_mov_b32 s88, 1
        s_atomic_add s88, s[86:87], 0 glc""")
    def qk_reduce(d, s):
        a(f"v_mov_b32_dpp v{s}, v{d} quad_perm:[0,0,0,0] {FULL}")
        for r in range(1, 4): a(f"v_add_f32_dpp v{s}, v{d+r}, v{s} quad_perm:[{r},{r},{r},{r}] {FULL}")
        rbf(s, s)
        a(f"v_mul_f32 v{s}, s84, v{s}")
        rbf(s, s)
    def read_qb():
        for r in range(8, 20): a(f"v_mov_b32 v{r}, 0")
        a("""
        v_bfe_u32 v60, v1, 4, 1
        v_lshlrev_b32 v60, 6, v60
        v_and_b32 v61, 3, v1
        v_lshl_add_u32 v60, v61, 4, v60
        s_mov_b64 exec, s[90:91]""")
        for j in range(3): a(f"ds_read_b128 {rng(8+4*j)}, v60 offset:{L_QBF + 128*j}")
        a("s_mov_b64 exec, -1\ns_waitcnt lgkmcnt(0)")

    a(f"""
    s_cmp_ge_u32 s2, 256
    s_cbranch_scc1 L_exit
    s_load_dwordx16 s[4:19], s[0:1], 0
    s_load_dwordx8 s[20:27], s[0:1], 64
    v_lshrrev_b32 v2, 6, v0
    v_and_b32 v1, 63, v0
    v_readfirstlane_b32 s3, v2
    """)
    if stamps: a("s_memrealtime s[92:93]")
    a(f"""
    v_bfe_u32 v2, v1, 2, 2
    v_mul_u32_u24 v2, 768, v2
    v_lshrrev_b32 v3, 5, v1
    v_mul_u32_u24 v3, 384, v3
    v_add_u32 v2, v2, v3
    v_bfe_u32 v3, v1, 4, 1
    v_lshl_add_u32 v2, v3, 6, v2
    v_and_b32 v3, 3, v1
    v_lshl_add_u32 v2, v3, 4, v2
    s_lshr_b32 s82, s2, 3
    s_and_b32 s83, s2, 7
    s_mul_i32 s80, s82, 3145728
    s_mul_i32 s48, s83, {7*NS}
    s_add_u32 s48, s48, s3
    s_sub_u32 s48, s48, 1
    s_mul_i32 s48, s48, 3072
    v_lshrrev_b32 v56, 3, v1
    v_and_b32 v57, 7, v1
    s_cmp_eq_u32 s3, 0
    s_waitcnt lgkmcnt(0)
    """)
    if prof: a("v_mov_b32 v33, 0")
    if stamps: a("v_writelane_b32 v0, s92, 0\ns_memtime s[92:93]\ns_waitcnt lgkmcnt(0)\nv_writelane_b32 v0, s92, 57")
    a("s_cbranch_scc1 L_w0a")
    a(f"""s_add_u32 s28, s6, s80
    s_addc_u32 s29, s7, 0
    s_mov_b32 s30, 3145728
    s_mov_b32 s31, 0x20000""")
    tile_loads(0, 28, 2, 48)
    if pf:
        a(f"""s_cmp_lg_u32 s3, 1
        s_cbranch_scc1 L_common
        s_getpc_b64 s[96:97]
        s_and_b32 s81, s82, 15
        s_lshl_b32 s81, s81, 10
        s_add_u32 s96, s96, s81
        s_addc_u32 s97, s97, 0
        v_lshlrev_b32 v60, 4, v1
        v_mov_b32 v61, s97
        v_add_co_u32 v60, vcc, s96, v60
        v_addc_co_u32 v61, vcc, 0, v61, vcc
        global_load_dwordx4 {rng(SLOT(DV,0))}, v[60:61], off
        """)
    a("s_branch L_common")
    a.label("L_w0a")
    a(f"""
    s_mul_i32 s81, s83, {80*12288}
    s_mul_i32 s95, s82, 384
    s_add_u32 s81, s81, s95
    """)
    srd(40, 10, 81, 7864320)
    srd(64, 4, None, 1280)
    a(f"""
    v_mul_u32_u24 v60, 20, v1
    v_mul_u32_u24 v61, 20, v56
    s_mul_i32 s81, s83, 160
    v_mul_u32_u24 v62, {10*12288}, v56
    v_lshl_add_u32 v62, v57, 4, v62
    buffer_load_dwordx4 v[184:187], v60, s[64:67], 0 offen
    buffer_load_dword v188, v60, s[64:67], 0 offen offset:16
    buffer_load_dwordx4 v[200:203], v61, s[64:67], s81 offen
    buffer_load_dword v204, v61, s[64:67], s81 offen offset:16
    v_mov_b32 v60, 0
    ds_write_b32 v60, v60 offset:{L_FLAG}
    """)
    for t in range(10):
        a(f"s_mov_b32 s81, {t*12288}")
        for j in range(3):
            a(f"buffer_load_dwordx4 {rng(SLOT(t,j))}, v62, s[40:43], s81 offen offset:{128*j} {wpol}")
    a(f"""s_add_u32 s28, s6, s80
    s_addc_u32 s29, s7, 0
    s_mov_b32 s30, 3145728
    s_mov_b32 s31, 0x20000
    s_waitcnt lgkmcnt(0)""")
    a.label("L_common")
    a("s_barrier")
    a(f"""s_add_u32 s32, s8, s80
    s_addc_u32 s33, s9, 0
    s_mov_b32 s34, 3145728
    s_mov_b32 s35, 0x20000""")
    srd(36, 26, None, WS_BYTES)
    srd(64, 4, None, 1280)
    a(f"""
    s_lshl_b32 s80, s82, 13
    s_add_u32 s80, s80, {OP + 960}
    s_add_u32 s86, s26, s80
    s_addc_u32 s87, s27, 0
    s_lshr_b32 s80, s82, 2
    s_sub_u32 s80, s83, s80
    s_and_b32 s80, s80, 7
    s_and_b32 s81, s82, 3
    s_mov_b32 s89, 0
    s_mov_b32 s50, s80
    s_mov_b32 s51, {NPOOL}
    s_cmp_eq_u32 s81, 0
    s_cbranch_scc0 L_role_c
    s_cmp_lt_u32 s80, 4
    s_cbranch_scc0 L_role_set
    s_mov_b32 s89, 1
    s_mov_b32 s51, {NPOOL - th_wo}
    s_branch L_role_set
    L_role_c:
    s_cmp_lt_u32 s80, 3
    s_cbranch_scc0 L_role_set
    s_mov_b32 s89, 1
    s_lshl_b32 s50, s81, 1
    s_add_u32 s50, s50, s80
    s_add_u32 s50, s50, 2
    s_mov_b32 s51, {NPOOL - th_wo}
    s_cmp_lt_u32 s80, 2
    s_cbranch_scc1 L_role_set
    s_mov_b32 s89, 2
    s_sub_u32 s50, s81, 1
    s_lshl_b32 s50, s50, 3
    s_add_u32 s50, s50, s83
    s_mov_b32 s51, {NPOOL - th_ff}
    L_role_set:
    s_mul_i32 s59, s82, {rot}
    s_lshl_b32 s60, s83, 3
    s_add_u32 s60, s60, s3
    s_sub_u32 s60, s60, 1
    v_mul_u32_u24 v3, 384, v56
    v_lshl_add_u32 v3, v57, 4, v3
    v_and_b32 v58, 1, v1
    v_mov_b32 v59, 0xffff
    v_lshlrev_b32 v58, 4, v58
    v_lshlrev_b32 v59, v58, v59
    v_lshrrev_b32 v58, 1, v57
    s_mov_b32 s90, 0x00ff00ff
    s_mov_b32 s91, 0xff00ff00
    s_mov_b32 s84, 0x3d93cd3a
    s_mov_b32 s85, 0x3fb8aa3b
    """)
    for r in range(4):
        a(f"v_cmp_eq_u32 vcc, {r}, v58")
        a(f"v_cndmask_b32 v{4+r}, 0, v59, vcc")
    a(f"""
    v_bfe_u32 v63, v1, 4, 1
    v_lshl_add_u32 v63, v63, 3, v57
    v_lshlrev_b32 v63, 4, v63
    v_lshrrev_b32 v58, 5, v1
    v_mul_u32_u24 v58, 768, v58
    s_mul_i32 s80, s3, {RSTR}
    v_add3_u32 v63, v63, v58, s80
    s_cmp_eq_u32 s3, 0
    s_cbranch_scc1 L_w0b
    """)
    q = []
    STEP = 7 * 3072
    for t in range(1, NS):
        a(f"s_add_u32 s49, s48, {t*STEP}")
        tile_loads(t, 28, 2, 49, throttle=LK - 1)
        pstamp(t)
    def vslot(t): return DV if t == NS - 1 else (NS + t if t < NSP else t - NSP)
    def issue_v(t, throttle=None):
        a(f"s_add_u32 s49, s48, {t*STEP}")
        tile_loads(vslot(t), 32, 3, 49, throttle)
        q.append(t)
    for t in range(NSP):
        issue_v(t, throttle=(LK - 1 if t < NSP - NB else None))
        pstamp(15 + t)
    stamp(5)
    n = poll_head()
    a(f"""v_mov_b32 v60, 0
    ds_read_b32 v61, v60 offset:{L_FLAG}
    s_waitcnt lgkmcnt(0)
    v_cmp_eq_u32 vcc, 0, v61
    s_nop 1""")
    poll_tail(n, sleep=2)
    stamp(6)
    read_qb()
    a(f"s_waitcnt vmcnt({3*NSP})")
    for t in range(NS):
        d = 48 + 4 * (t & 1)
        for j in range(3): mfma(d, SLOT(t, j), 8 + 4 * j, first=(j == 0))
        if t > 0: qk_reduce(48 + 4 * ((t - 1) & 1), 20 + t - 1)
    qk_reduce(48 + 4 * ((NS - 1) & 1), 20 + NS - 1)
    regs = list(range(20, 20 + NS))
    a(f"v_max_f32 v58, v{regs[0]}, v{regs[1]}")
    rest = regs[2:]
    while len(rest) >= 2:
        a(f"v_max3_f32 v58, v58, v{rest[0]}, v{rest[1]}"); rest = rest[2:]
    if rest: a(f"v_max_f32 v58, v58, v{rest[0]}")
    grp_red("v_max_f32", [58])
    a("v_readlane_b32 s80, v58, 63\nv_mov_b32 v58, s80")
    for r in regs: a(f"v_sub_f32 v{r}, v{r}, v58")
    for r in regs: a(f"v_mul_f32 v{r}, s85, v{r}")
    for r in regs: a(f"v_exp_f32 v{r}, v{r}")
    a(f"v_add_f32 v59, v{regs[0]}, v{regs[1]}")
    for r in regs[2:]: a(f"v_add_f32 v59, v59, v{r}")
    for r in regs: a(f"v_cvt_pk_bf16_f32 v{r}, v{r}, v{r}")
    stamp(7)
    for t in range(NS - 1):
        bbuild(48, 20 + t)
        a(f"s_waitcnt vmcnt({3*(len(q) - 1 - q.index(t))})")
        for j in range(3): mfma(36 + 4 * j, SLOT(vslot(t), j), 48, first=(t == 0))
        if NSP <= t + LA < NS:
            issue_v(t + LA); pstamp(15 + t + LA)
        if t == NS - 3: ticket_req()
    stamp(8)
    a(f"""s_waitcnt lgkmcnt(0)
    s_add_u32 s52, s88, 1
    s_cmp_lt_u32 s52, {NPOOL}
    s_cbranch_scc0 L_st_nok
    {POOLOFF}""")
    tile_loads(DK, 28, 2, 49)
    if early_tk: ticket_req()
    a.label("L_st_nok")
    bbuild(48, 20 + NS - 1)
    a("s_branch L_burst")

    a.label("L_w0b")
    srd(68, 24, None, 256)
    a(f"""
    v_mov_b32 v52, -1
    v_mov_b32 v53, -1
    v_mov_b32 v54, -1
    v_mov_b32 v55, -1
    v_lshlrev_b32 v60, 4, v1
    s_lshl_b32 s80, s2, 10
    s_add_u32 s80, s80, {OP}
    buffer_store_dwordx4 v[52:55], v60, s[36:39], s80 offen sc1
    s_cmp_eq_u32 s89, 0
    s_cbranch_scc1 L_clr_done
    s_cmp_eq_u32 s89, 2
    s_cbranch_scc1 L_clr_ffn
    s_mul_i32 s80, s83, 2560
    s_lshl_b32 s81, s50, 8
    s_add_u32 s80, s80, s81
    s_add_u32 s80, s80, {YP}
    s_mov_b64 exec, 0xffff
    buffer_store_dwordx4 v[52:55], v60, s[36:39], s80 offen sc1
    s_mov_b64 exec, -1
    s_branch L_clr_done
    L_clr_ffn:
    s_mul_i32 s80, s50, 2560
    s_add_u32 s80, s80, {ZP}
    buffer_store_dwordx4 v[52:55], v60, s[36:39], s80 offen sc1
    buffer_store_dwordx4 v[52:55], v60, s[36:39], s80 offen offset:1024 sc1
    s_mov_b32 exec_hi, 0
    buffer_store_dwordx4 v[52:55], v60, s[36:39], s80 offen offset:2048 sc1
    s_mov_b64 exec, -1
    L_clr_done:
    s_waitcnt vmcnt(31)
    """)
    unpack(190, 184, 5); unpack(206, 200, 5)
    a("v_add_f32 v60, v190, v191")
    for i in range(2, 10): a(f"v_add_f32 v60, v60, v{190+i}")
    oct_red("v_add_f32", [60]); grp_red("v_add_f32", [60])
    a(f"""v_readlane_b32 s80, v60, 63
    v_mov_b32 v61, 0x3acccccd
    v_mul_f32 v61, s80, v61""")
    for i in range(10): a(f"v_sub_f32 v{190+i}, v{190+i}, v61")
    a("v_mul_f32 v60, v190, v190")
    for i in range(1, 10): a(f"v_fmac_f32 v60, v{190+i}, v{190+i}")
    oct_red("v_add_f32", [60]); grp_red("v_add_f32", [60])
    a(f"""v_readlane_b32 s80, v60, 63
    v_mov_b32 v62, 0x3acccccd
    v_mul_f32 v62, s80, v62""")
    rbf(61, 61); rbf(62, 62)
    a("v_add_f32 v62, 0x3727c5ac, v62"); rbf(62, 62)
    a("v_sqrt_f32 v62, v62"); rbf(62, 62)
    a("v_rcp_f32 v62, v62")
    for i in range(10):
        r = 206 + i
        a(f"v_sub_f32 v{r}, v{r}, v61"); rbf(r, r)
        a(f"v_mul_f32 v{r}, v{r}, v62")
        a(f"v_cvt_pk_bf16_f32 v{r}, v{r}, v{r}")
    a("s_waitcnt vmcnt(1)")
    stamp(1)
    for t in range(10):
        b = 48 + 4 * (t & 1)
        bbuild(b, 206 + t)
        for j in range(3): mfma(36 + 4 * j, SLOT(t, j), b, first=(t == 0))
    red_write([36, 40, 44])
    a(f"""
    v_lshlrev_b32 v60, 4, v1
    s_mul_i32 s80, s2, 768
    s_mov_b32 exec_hi, 0xffff
    s_waitcnt lgkmcnt(0)
    ds_read_b128 v[48:51], v60 offset:{L_RED}
    ds_read_b128 v[52:55], v60 offset:{L_RED + 768}
    s_waitcnt lgkmcnt(0)
    v_add_f32 v48, v48, v52
    v_add_f32 v49, v49, v53
    v_add_f32 v50, v50, v54
    v_add_f32 v51, v51, v55
    buffer_store_dwordx4 v[48:51], v60, s[36:39], s80 offen sc1
    s_lshl_b32 s80, s82, 3
    s_add_u32 s96, s24, s80
    s_addc_u32 s97, s25, 0
    s_mov_b32 s88, 1
    s_sub_u32 s98, s86, {960 - 896}
    s_subb_u32 s99, s87, 0
    s_waitcnt vmcnt(0)
    s_atomic_add s88, s[96:97], 0 glc
    s_waitcnt lgkmcnt(0)
    """)
    stamp(2)
    a(f"""
    s_and_b32 s88, s88, 7
    s_cmp_eq_u32 s88, 7
    s_cbranch_scc0 L_wait_go
    s_mov_b32 s95, 1
    """)
    for s in range(8): a(f"s_atomic_add s95, s[98:99], {1024*s}")
    a("""s_branch L_go
    L_wait_go:
    s_lshl_b32 s80, s83, 10
    s_add_u32 s98, s98, s80
    s_addc_u32 s99, s99, 0""")
    n = poll_head()
    a("""s_load_dword s88, s[98:99], 0 glc
    s_waitcnt lgkmcnt(0)
    s_cmp_lg_u32 s88, -1""")
    poll_tail(n, cond="scc1", sleep=1)
    a.label("L_go")
    stamp(3)
    a(f"""
    s_mul_i32 s80, s82, 6144
    s_add_u32 s81, s80, 3072
    """)
    for s in range(8):
        a(f"buffer_load_dwordx4 {rng(64+4*s)}, v60, s[36:39], s{80 + s//4} offen offset:{768*(s%4)} sc1")
    ticket_req()
    a(f"""v_lshlrev_b32 v61, 6, v56
    v_lshl_add_u32 v61, v57, 1, v61
    s_waitcnt vmcnt(0)""")
    for s in range(1, 8):
        for r in range(4): a(f"v_add_f32 v{64+r}, v{64+r}, v{64+4*s+r}")
    a(f"""
    v_cvt_pk_bf16_f32 v48, v64, v65
    v_cvt_pk_bf16_f32 v49, v66, v67
    ds_write_b16 v61, v48 offset:{L_QBF}
    ds_write_b16_d16_hi v61, v48 offset:{L_QBF + 16}
    ds_write_b16 v61, v49 offset:{L_QBF + 32}
    ds_write_b16_d16_hi v61, v49 offset:{L_QBF + 48}
    s_mov_b64 exec, -1
    v_mov_b32 v60, 0
    v_mov_b32 v61, 1
    s_waitcnt lgkmcnt(0)
    ds_write_b32 v60, v61 offset:{L_FLAG}
    """)
    stamp(4)
    a(f"""s_cmp_eq_u32 s89, 0
    s_cbranch_scc1 L_w0c
    v_and_b32 v62, 31, v1
    v_lshlrev_b32 v62, 3, v62""")
    n = poll_head()
    a("""buffer_load_dword v61, v62, s[68:71], 0 offen sc1
    s_waitcnt vmcnt(0)
    v_cmp_gt_u32 vcc, 8, v61
    s_nop 1""")
    poll_tail(n, sleep=16)
    a.label("L_w0c")
    a(f"""s_add_u32 s52, s88, 1
    s_cmp_lt_u32 s52, {NPOOL}
    s_cbranch_scc0 L_w0_nok
    {POOLOFF}""")
    tile_loads(DK, 28, 2, 49)
    if early_tk: ticket_req()
    a.label("L_w0_nok")
    read_qb()
    for r in list(range(36, 52)) + list(range(SLOT(DV), SLOT(DV) + 12)) + [59]: a(f"v_mov_b32 v{r}, 0")
    a("v_mov_b32 v58, 0xff7fffff")
    WG_, WU_, WD_, XC = 64, 104, 144, 22
    def wo_loads(ts, thr=None):
        for t in ts:
            a(f"s_mov_b32 s80, {t*8*1280}")
            a(f"buffer_load_dwordx4 {rng(64+4*t)}, v34, s[40:43], s80 offen {wpol}")
            if thr: a(f"s_waitcnt vmcnt({thr-1})")
    def dn_loads(ts, thr=None):
        for tt in ts:
            a(f"s_mov_b32 s80, {(8*(tt&3) + (tt>>2))*1280}")
            for jb in range(2):
                a(f"buffer_load_dwordx4 {rng(WD_+8*tt+4*jb)}, v35, s[72:75], s80 offen offset:{128*jb} {wpol}")
            if thr: a(f"s_waitcnt vmcnt({thr-2})")
    a.label("L_burst")
    a(f"""s_cmp_eq_u32 s89, 0
    s_cbranch_scc1 L_after_sm
    s_cmp_eq_u32 s89, 2
    s_cbranch_scc1 L_burst_ffn
    s_lshl_b32 s80, s83, 3
    s_add_u32 s80, s80, s3
    s_mul_i32 s80, s80, {96*1280}
    s_lshl_b32 s81, s50, 7
    s_add_u32 s80, s80, s81
    """)
    srd(40, 12, 80, 7864320)
    a(f"""
    v_mul_u32_u24 v34, 1280, v56
    v_lshl_add_u32 v34, v57, 4, v34
    """)
    wo_loads(range(12 - wo_late), LW)
    a("s_branch L_after_sm")
    a.label("L_burst_ffn")
    a(f"""
    s_mul_i32 s80, s3, {80*3072}
    s_lshl_b32 s81, s50, 7
    s_add_u32 s80, s80, s81
    """)
    srd(40, 16, 80, 1966080); srd(44, 18, 80, 1966080)
    a(f"""
    s_mul_i32 s80, s50, {64*1280}
    s_lshl_b32 s81, s3, 8
    s_add_u32 s80, s80, s81
    """)
    srd(72, 20, 80, 1966080)
    a(f"""
    v_mul_u32_u24 v34, 3072, v56
    v_lshl_add_u32 v34, v57, 4, v34
    v_lshrrev_b32 v35, 2, v56
    v_lshlrev_b32 v35, 5, v35
    v_and_b32 v60, 3, v56
    v_lshl_add_u32 v35, v60, 1, v35
    v_mul_u32_u24 v35, 1280, v35
    v_lshl_add_u32 v35, v57, 4, v35
    """)
    for t in range(10):
        a(f"s_mov_b32 s80, {t*8*3072}")
        a(f"buffer_load_dwordx4 {rng(WG_+4*t)}, v34, s[40:43], s80 offen {wpol}")
        a(f"buffer_load_dwordx4 {rng(WU_+4*t)}, v34, s[44:47], s80 offen {wpol}")
        if LW: a(f"s_waitcnt vmcnt({LW-2})")
    a(f"""s_cmp_ge_u32 s3, 5
    s_cbranch_scc1 L_after_sm
    v_and_b32 v60, 3, v56
    v_lshlrev_b32 v60, 6, v60
    v_lshl_add_u32 v60, v57, 1, v60
    v_lshrrev_b32 v61, 5, v1
    v_lshl_add_u32 v60, v61, 5, v60
    s_lshl_b32 s81, s3, 8
    buffer_load_ushort v{XC}, v60, s[64:67], s81 offen
    buffer_load_ushort v{XC+1}, v60, s[64:67], s81 offen offset:16
    """)
    dn_loads(range(8 - dn_late), LW)
    a("s_branch L_after_sm")

    a.label("L_rescale")
    a("v_mov_b32 v60, v20")
    grp_red("v_max_f32", [60])
    a(f"""v_readlane_b32 s80, v60, 63
    v_sub_f32 v60, v58, s80
    v_mul_f32 v60, s85, v60
    v_exp_f32 v60, v60
    v_mov_b32 v58, s80""")
    for r in list(range(36, 48)) + [59]: a(f"v_mul_f32 v{r}, v{r}, v60")
    a("s_branch L_back")
    a(".p2align 6")
    a.label("L_top")
    a("s_waitcnt vmcnt(3) lgkmcnt(0)")
    pstamp(None)
    for j in range(3): mfma(52, SLOT(DK, j), 8 + 4 * j, first=(j == 0))
    a(f"""s_add_u32 s52, s88, 1
    s_cmp_lt_u32 s52, {NPOOL}
    s_cbranch_scc0 L_skipk
    {POOLOFF}""")
    tile_loads(DK, 28, 2, 49)
    if early_tk:
        a(f"""s_mov_b32 s88, {NPOOL}
        s_cmp_lt_u32 s52, s51
        s_cbranch_scc0 L_skipk""")
        ticket_req()
    a.label("L_skipk")
    a("s_nop 7")
    qk_reduce(52, 20)
    a("""v_cmp_gt_f32 vcc, v20, v58
    s_nop 1
    s_cbranch_vccnz L_rescale""")
    a.label("L_back")
    a("""v_sub_f32 v20, v20, v58
    v_mul_f32 v20, s85, v20
    v_exp_f32 v20, v20
    s_nop 0
    v_add_f32 v59, v59, v20
    v_cvt_pk_bf16_f32 v20, v20, v20""")
    bbuild(48, 20)
    a.label("L_after_sm")
    a(f"""s_cmp_lt_u32 s52, {NPOOL}
    s_cbranch_scc0 L_last
    s_waitcnt vmcnt(3)""")
    for j in range(3): mfma(36 + 4 * j, SLOT(DV, j), 48)
    tile_loads(DV, 32, 3, 49)
    if stamps: a("s_add_u32 s53, s53, 1")
    if not early_tk:
        a(f"""s_mov_b32 s88, {NPOOL}
        s_cmp_lt_u32 s52, s51
        s_cbranch_scc0 L_top""")
        ticket_req()
    a("s_branch L_top")

    a.label("L_last")
    stamp(9)
    if stamps: a("s_memtime s[92:93]\ns_waitcnt lgkmcnt(0)\nv_writelane_b32 v0, s92, 58")
    if prof:
        a(f"""s_lshl_b32 s80, s2, 3
        s_add_u32 s80, s80, s3
        s_lshl_b32 s80, s80, 8
        s_add_u32 s80, s80, {ST + 0x80000}
        v_lshlrev_b32 v60, 2, v1
        buffer_store_dword v33, v60, s[36:39], s80 offen""")
    grp_red("v_add_f32", [59])
    a(f"""s_lshl_b32 s80, s3, 3
    v_mov_b32 v61, s80
    s_mov_b32 exec_lo, 0
    s_mov_b32 exec_hi, 0x80000000
    ds_write_b64 v61, v[58:59] offset:{L_ML}
    s_mov_b64 exec, -1
    v_add_u32 v60, s80, v56
    v_mul_u32_u24 v61, 43, v60
    v_lshrrev_b32 v61, 7, v61
    v_mul_u32_u24 v62, 3, v61
    v_sub_u32 v60, v60, v62
    v_lshl_add_u32 v60, v60, 3, v61
    v_lshrrev_b32 v61, 3, v61
    v_lshl_add_u32 v60, v61, 4, v60
    v_mul_u32_u24 v61, {RSTR}, v57
    v_lshl_add_u32 v2, v56, 4, v61
    v_lshl_add_u32 v60, v60, 4, v61
    v_lshlrev_b32 v61, 3, v57
    s_lshl_b32 s80, s3, 7
    s_lshl_b32 s81, s2, 10
    s_add_u32 s81, s81, {OP}
    s_add_u32 s80, s80, s81
    s_lshl_b32 s81, s82, 13
    s_lshl_b32 s95, s83, 3
    s_add_u32 s81, s81, s95
    s_add_u32 s81, s81, {OP + 768}
    v_lshlrev_b32 v62, 4, v56
    s_waitcnt vmcnt(0)""")
    for j in range(3): mfma(36 + 4 * j, SLOT(DV, j), 48)
    stamp(10)
    red_write([36, 40, 44])
    a("s_waitcnt lgkmcnt(0)\ns_barrier")
    stamp(11)
    a(f"""s_cmp_eq_u32 s3, 7
    s_cbranch_scc1 L_nopub
    ds_read_b64 v[58:59], v61 offset:{L_ML}""")
    red_read(48, 60, 0)
    a(f"s_waitcnt lgkmcnt(2)\nv_max_f32_dpp v20, v58, v58 quad_perm:[1,0,3,2] {FULL}")
    dpp("v_max_f32", 20, "quad_perm:[2,3,0,1]"); dpp("v_max_f32", 20, "row_half_mirror")
    a(f"""v_sub_f32 v21, v58, v20
    v_mul_f32 v21, s85, v21
    v_exp_f32 v21, v21
    s_cmp_eq_u32 s3, 6
    s_waitcnt lgkmcnt(0)
    s_cbranch_scc1 L_pubml
    v_pk_add_f32 v[48:49], v[48:49], v[52:53]
    v_pk_add_f32 v[50:51], v[50:51], v[54:55]""")
    for r in range(4): a(f"v_mul_f32 v{48+r}, v{48+r}, v21")
    oct_red("v_add_f32", range(48, 52))
    a(f"""s_mov_b32 exec_lo, 0x01010101
    s_mov_b32 exec_hi, 0x01010101
    buffer_store_dwordx4 v[48:51], v62, s[36:39], s80 offen sc1
    s_mov_b64 exec, -1
    s_branch L_nopub
    L_pubml:
    v_mul_f32 v21, v21, v59""")
    oct_red("v_add_f32", [21])
    a(f"""s_mov_b64 exec, 1
    buffer_store_dwordx2 v[20:21], v62, s[36:39], s81 offen sc1
    s_mov_b64 exec, -1
    L_nopub:""")
    stamp(12)
    a(f"""s_cmp_eq_u32 s89, 0
    s_cbranch_scc1 L_done
    s_cmp_eq_u32 s89, 2
    s_cbranch_scc1 L_role_ffn""")

    wo_loads(range(12 - wo_late, 12))
    a(f"""
    s_lshr_b32 s80, s3, 1
    s_lshl_b32 s81, s83, 2
    s_add_u32 s80, s80, s81
    s_lshl_b32 s80, s80, 13
    s_add_u32 s80, s80, {OP}
    s_and_b32 s81, s3, 1
    s_mul_i32 s81, s81, 384
    s_add_u32 s81, s81, s80
    v_and_b32 v60, 3, v1
    v_min_u32 v60, 2, v60
    v_mad_u32_u24 v60, v56, 3, v60
    v_lshlrev_b32 v60, 4, v60
    v_bfe_u32 v62, v1, 2, 1
    v_lshl_add_u32 v60, v62, 12, v60
    s_lshl_b32 s95, s3, 7
    v_add_u32 v3, s95, v2
    s_mul_i32 s54, s83, 2560
    s_add_u32 s54, s54, s95
    s_lshl_b32 s95, s50, 8
    s_add_u32 s54, s54, s95
    s_add_u32 s54, s54, {YP}
    v_lshlrev_b32 v33, 4, v56
    """)
    G = 128
    m, l = G + 16, G + 17
    n = poll_head()
    a(f"buffer_load_dwordx2 {rng(m,2)}, v61, s[36:39], s80 offen offset:768 sc1")
    for i in range(4): a(f"buffer_load_dwordx4 {rng(G+4*i)}, v60, s[36:39], s81 offen offset:{1024*i} sc1")
    a("s_waitcnt vmcnt(0)")
    sent_check(range(G, G + 18), 62)
    poll_tail(n)
    stamp(13)
    a(f"v_max_f32_dpp v62, v{m}, v{m} quad_perm:[1,0,3,2] {FULL}")
    dpp("v_max_f32", 62, "quad_perm:[2,3,0,1]"); dpp("v_max_f32", 62, "row_half_mirror")
    a(f"""v_sub_f32 v62, v{m}, v62
    v_mul_f32 v62, s85, v62
    v_exp_f32 v62, v62
    s_nop 0
    v_mul_f32 v{l}, v{l}, v62""")
    AC, TT = 20, 24
    ctls = ["quad_perm:[1,0,3,2]", "quad_perm:[2,3,0,1]", "row_half_mirror"]
    for i in range(4):
        for r in range(4):
            op = "v_mul_f32_dpp" if i == 0 else "v_fmac_f32_dpp"
            a(f"{op} v{AC+r}, v62, v{G+4*i+r} quad_perm:[{i},{i},{i},{i}] {FULL}")
        if i < 3: dpp("v_add_f32", l, ctls[i])
    a(f"v_rcp_f32 v{l}, v{l}")
    for r in range(4): a(f"v_add_f32_dpp v{TT+r}, v{AC+r}, v{AC+r} row_shl:4 row_mask:0xf bank_mask:0x5")
    for r in range(4): a(f"v_add_f32_dpp v{TT+r}, v{AC+r}, v{AC+r} row_shr:4 row_mask:0xf bank_mask:0xa")
    for r in range(4): a(f"v_mul_f32 v{TT+r}, v{TT+r}, v{l}")
    for r in range(4): a(f"v_cvt_pk_bf16_f32 v{TT+r}, v{TT+r}, v{TT+r}")
    for t in range(12):
        k, r = t >> 2, t & 3
        b = 48 + 4 * (t & 1)
        for x in range(4): a(f"v_and_b32_dpp v{b+x}, v{TT+r}, v{4+x} quad_perm:[{k},{k},{k},{k}] {FULL}")
        if t > 0: mfma(36, 64 + 4 * (t - 1), 48 + 4 * ((t - 1) & 1), first=(t == 1))
    mfma(36, 64 + 4 * 11, 48 + 4 * (11 & 1))
    red_write([36], L_RED2)
    a(f"""s_waitcnt lgkmcnt(0)
    s_barrier
    s_cmp_ge_u32 s3, 2
    s_cbranch_scc1 L_done""")
    red_read(48, 3, 0, L_RED2)
    a(f"""s_waitcnt lgkmcnt(0)
    v_pk_add_f32 v[48:49], v[48:49], v[52:53]
    v_pk_add_f32 v[50:51], v[50:51], v[54:55]""")
    oct_red("v_add_f32", range(48, 52))
    a("""s_mov_b32 exec_lo, 0x01010101
    s_mov_b32 exec_hi, 0x01010101
    buffer_store_dwordx4 v[48:51], v33, s[36:39], s54 offen sc1
    s_mov_b64 exec, -1""")
    stamp(14)
    a("s_branch L_done")

    a.label("L_role_ffn")
    if dn_late:
        a("s_cmp_ge_u32 s3, 5\ns_cbranch_scc1 L_nodn")
        dn_loads(range(8 - dn_late, 8))
        a.label("L_nodn")
    def fold_write(base):
        for r in range(4): a(f"v_permlane32_swap_b32 v{36+r}, v{40+r}")
        for r in range(4): a(f"v_add_f32_dpp v{36+r}, v{40+r}, v{36+r} row_ror:8 {FULL}")
        if base is not None:
            a(f"""s_mov_b32 exec_lo, 0x00ff00ff
            s_mov_b32 exec_hi, 0x00ff00ff
            ds_write_b128 v32, v[36:39] offset:{base}
            s_mov_b64 exec, -1""")
    def gu_reads(base, dst):
        for w in range(8): a(f"ds_read2st64_b32 {rng(dst+2*w,2)}, v33 offset0:{base//256 + 2*w} offset1:{base//256 + 2*w + 1}")
    def gu_sum(dst, res):
        for w in range(0, 8, 2): a(f"v_pk_add_f32 {rng(dst+2*w,2)}, {rng(dst+2*w,2)}, {rng(dst+2*w+2,2)}")
        for w in range(0, 8, 4): a(f"v_pk_add_f32 {rng(dst+2*w,2)}, {rng(dst+2*w,2)}, {rng(dst+2*w+4,2)}")
        a(f"v_pk_add_f32 {rng(res,2)}, {rng(dst,2)}, {rng(dst+8,2)}")
    G = 208
    CS = 24
    a(f"""v_mov_b32 v60, 0x3f803f80
    v_lshrrev_b32 v61, 4, v1
    v_lshl_add_u32 v31, v61, 3, v57
    v_lshlrev_b32 v31, 4, v31
    s_lshl_b32 s80, s3, 9
    v_add_u32 v32, s80, v31
    v_lshlrev_b32 v33, 2, v1""")
    bbuild(48, 60)
    for t in range(10):
        mfma(36, WG_ + 4 * t, 48, first=(t == 0))
        mfma(40, WU_ + 4 * t, 48, first=(t == 0))
    fold_write(L_CS)
    a(f"""s_mul_i32 s80, s3, 5
    s_lshr_b32 s81, s80, 1
    s_lshl_b32 s81, s81, 7
    s_and_b32 s95, s80, 1
    s_lshl_b32 s95, s95, 3
    s_add_u32 s81, s81, s95
    v_lshl_add_u32 v28, v56, 4, s81
    s_add_u32 s80, s80, 1
    s_lshr_b32 s81, s80, 1
    s_lshl_b32 s81, s81, 7
    s_and_b32 s95, s80, 1
    s_lshl_b32 s95, s95, 3
    s_add_u32 s81, s81, s95
    v_lshl_add_u32 v29, v56, 4, s81
    v_mul_u32_u24 v30, 40, v1
    s_waitcnt lgkmcnt(0)
    s_barrier
    s_cmp_ge_u32 s3, 5
    s_cbranch_scc1 L_barA""")
    gu_reads(L_CS, G)
    a(f"""v_lshrrev_b32 v61, 5, v1
    v_mul_u32_u24 v60, 2560, v61
    v_and_b32 v62, 31, v1
    v_lshl_add_u32 v60, v62, 4, v60
    v_lshlrev_b32 v62, 4, v62
    v_lshl_add_u32 v61, v61, 3, v62
    s_lshl_b32 s80, s3, 9
    v_add_u32 v61, s80, v61
    v_lshlrev_b32 v{XC}, 16, v{XC}
    v_lshlrev_b32 v{XC+1}, 16, v{XC+1}
    s_mul_i32 s58, s50, 2560
    s_add_u32 s58, s58, s80
    s_add_u32 s58, s58, {ZP}""")
    for i in range(4): a(f"s_add_u32 s{54+i}, s80, {YP + 5120*i}")
    a("s_waitcnt lgkmcnt(0)")
    gu_sum(G, CS)
    n = poll_head()
    for i in range(4): a(f"buffer_load_dwordx4 {rng(G+4*i)}, v60, s[36:39], s{54+i} offen sc1")
    a("s_waitcnt vmcnt(0)")
    sent_check(range(G, G + 16), 62)
    poll_tail(n)
    stamp(13)
    a(f"""v_pk_add_f32 {rng(G,2)}, {rng(G,2)}, {rng(G+4,2)}
    v_pk_add_f32 {rng(G+2,2)}, {rng(G+2,2)}, {rng(G+6,2)}
    v_pk_add_f32 {rng(G+8,2)}, {rng(G+8,2)}, {rng(G+12,2)}
    v_pk_add_f32 {rng(G+10,2)}, {rng(G+10,2)}, {rng(G+14,2)}
    v_pk_add_f32 {rng(G,2)}, {rng(G,2)}, {rng(G+8,2)}
    v_pk_add_f32 {rng(G+2,2)}, {rng(G+2,2)}, {rng(G+10,2)}
    v_permlane32_swap_b32 v{G}, v{G+2}
    v_permlane32_swap_b32 v{G+1}, v{G+3}
    v_pk_add_f32 {rng(G,2)}, {rng(G,2)}, {rng(G+2,2)}
    v_cvt_pk_bf16_f32 v{G+2}, v{G}, v{G+1}
    v_lshlrev_b32 v{G}, 16, v{G+2}
    v_and_b32 v{G+1}, 0xffff0000, v{G+2}
    v_pk_add_f32 {rng(G,2)}, {rng(G,2)}, {rng(XC,2)}
    v_cvt_pk_bf16_f32 v{G}, v{G}, v{G}
    v_cvt_pk_bf16_f32 v{G+1}, v{G+1}, v{G+1}
    ds_write_b64 v61, {rng(G,2)} offset:{L_H}
    s_waitcnt lgkmcnt(0)""")
    a.label("L_barA")
    a("s_barrier")
    stamp(14)
    H, SH = G, G + 12
    a(f"""ds_read2_b64 {rng(H,4)}, v28 offset0:{L_H//8} offset1:{L_H//8 + 16}
    ds_read2_b64 {rng(H+4,4)}, v29 offset0:{L_H//8} offset1:{L_H//8 + 16}
    ds_read_b64 {rng(H+8,2)}, v28 offset:{L_H + 256}""")
    for k in range(5): a(f"ds_read_b64 {rng(SH+2*k,2)}, v30 offset:{L_H + 8*k}")
    order = [(0, H), (1, H + 1), (4, H + 2), (5, H + 3), (2, H + 4), (3, H + 5), (6, H + 6), (7, H + 7), (8, H + 8), (9, H + 9)]
    stat = []
    for k in range(10): stat.append(f"v_and_b32 v{SH+k}, 0xffff0000, v{SH+k}")
    stat.append(f"v_pk_mul_f32 v[26:27], {rng(SH,2)}, {rng(SH,2)}")
    for k in range(1, 5): stat.append(f"v_pk_fma_f32 v[26:27], {rng(SH+2*k,2)}, {rng(SH+2*k,2)}, v[26:27]")
    for k in range(1, 5): stat.append(f"v_pk_add_f32 {rng(SH,2)}, {rng(SH,2)}, {rng(SH+2*k,2)}")
    stat.append("v_add_f32 v59, v26, v27")
    stat.append(f"v_add_f32 v58, v{SH}, v{SH+1}")
    for ctl, mk in (("quad_perm:[1,0,3,2]", FULL), ("quad_perm:[2,3,0,1]", FULL), ("row_half_mirror", FULL), ("row_ror:8", FULL),
                    ("row_bcast:15", "row_mask:0xa bank_mask:0xf"), ("row_bcast:31", "row_mask:0xc bank_mask:0xf")):
        stat.append(f"v_add_f32_dpp v59, v59, v59 {ctl} {mk}")
        stat.append(f"v_add_f32_dpp v58, v58, v58 {ctl} {mk}")
    stat += ["v_mul_f32 v59, 0x3acccccd, v59", "v_mul_f32 v58, 0x3acccccd, v58",
             "v_fma_f32 v59, -v58, v58, v59", "v_cvt_pk_bf16_f32 v58, v58, v58", "v_max_f32 v59, 0, v59",
             "v_and_b32 v58, 0xffff0000, v58", "v_cvt_pk_bf16_f32 v59, v59, v59", "v_and_b32 v59, 0xffff0000, v59",
             "v_add_f32 v59, 0x3727c5ac, v59", "v_cvt_pk_bf16_f32 v59, v59, v59", "v_and_b32 v59, 0xffff0000, v59",
             "v_sqrt_f32 v59, v59", "v_readlane_b32 s96, v58, 63", "v_cvt_pk_bf16_f32 v59, v59, v59", "v_and_b32 v59, 0xffff0000, v59",
             "v_rcp_f32 v59, v59", f"v_mul_f32 v{CS}, s96, v{CS}", f"v_mul_f32 v{CS+1}, s96, v{CS+1}", "v_readlane_b32 s97, v59, 63"]
    per = -(-len(stat) // 8)
    for idx, (t, hr) in enumerate(order):
        if idx == 0: a("s_waitcnt lgkmcnt(7)")
        if idx == 2: a("s_waitcnt lgkmcnt(0)")
        b = 48 + 4 * (idx & 1)
        bbuild(b, hr)
        if idx >= 2:
            for ln in stat[:per // 2]: a(ln)
            stat = stat[per // 2:]
        mfma(36, WG_ + 4 * t, b, first=(idx == 0))
        if idx >= 2:
            for ln in stat[:per - per // 2]: a(ln)
            stat = stat[per - per // 2:]
        mfma(40, WU_ + 4 * t, b, first=(idx == 0))
    for ln in stat: a(ln)
    fold_write(L_GU)
    a(f"""s_waitcnt lgkmcnt(0)
    s_barrier""")
    stamp(15)
    a(f"""
    s_cmp_ge_u32 s3, 5
    s_cbranch_scc1 L_final""")
    gu_reads(L_GU, G)
    a("s_waitcnt lgkmcnt(0)")
    gu_sum(G, G)
    a(f"""v_sub_f32 v{G}, v{G}, v{CS}
    v_sub_f32 v{G+1}, v{G+1}, v{CS+1}
    v_mul_f32 v{G}, s97, v{G}
    v_mul_f32 v{G+1}, s97, v{G+1}
    v_max_f32 v{G}, 0, v{G}
    v_cvt_pk_bf16_f32 v{G+2}, v{G}, v{G+1}
    v_lshlrev_b32 v{G}, 16, v{G+2}
    v_and_b32 v{G+1}, 0xffff0000, v{G+2}
    v_mul_f32 v{G}, v{G}, v{G+1}
    v_cvt_pk_bf16_f32 v{G}, v{G}, v{G}
    s_waitcnt vmcnt(0)""")
    for tt in range(8):
        b = 48 + 4 * (tt & 1)
        a(f"v_mov_b32_dpp v{G+2}, v{G} row_newbcast:{tt} row_mask:0xf bank_mask:0x3")
        a(f"v_mov_b32_dpp v{G+2}, v{G} row_newbcast:{8+tt} row_mask:0xf bank_mask:0xc")
        bbuild(b, G + 2)
        if tt > 0:
            for jb in range(2): mfma(36 + 4 * jb, WD_ + 8 * (tt - 1) + 4 * jb, 48 + 4 * ((tt - 1) & 1), first=(tt == 1))
    for jb in range(2): mfma(36 + 4 * jb, WD_ + 8 * 7 + 4 * jb, 48 + 4 * (7 & 1))
    fold_write(None)
    a(f"""s_mov_b32 exec_lo, 0x00ff00ff
    s_mov_b32 exec_hi, 0x00ff00ff
    buffer_store_dwordx4 v[36:39], v31, s[36:39], s58 offen sc1
    s_mov_b64 exec, -1""")
    stamp(16)
    a("s_branch L_done")
    a.label("L_final")
    a(f"""
    s_cmp_lg_u32 s3, 5
    s_cbranch_scc1 L_done
    s_cmp_ge_u32 s50, 20
    s_cbranch_scc1 L_done
    """)
    srd(76, 22, None, 1280)
    a(f"""
    s_lshl_b32 s80, s50, 7
    v_mul_u32_u24 v60, 2560, v56
    v_lshl_add_u32 v60, v57, 4, v60
    v_lshrrev_b32 v58, 4, v1
    v_lshl_add_u32 v59, v57, 2, v58
    v_lshl_add_u32 v59, v59, 2, s80
    ds_read_b32 v20, v59 offset:{L_H}
    v_lshl_add_u32 v59, v58, 3, v57
    v_lshlrev_b32 v59, 1, v59
    s_lshl_b32 s81, s50, 6
    """)
    for k in range(3): a(f"s_add_u32 s{54+k}, s80, {ZP + k*8*2560}")
    a("s_waitcnt lgkmcnt(0)\nv_and_b32 v20, 0xffff0000, v20")
    n = poll_head()
    for k in range(3): a(f"buffer_load_dwordx4 {rng(G+4*k)}, v60, s[36:39], s{54+k} offen sc1")
    a("s_waitcnt vmcnt(0)")
    sent_check(range(G, G + 12), 62)
    poll_tail(n)
    stamp(17)
    a(f"""v_pk_add_f32 {rng(G,2)}, {rng(G,2)}, {rng(G+4,2)}
    v_pk_add_f32 {rng(G+2,2)}, {rng(G+2,2)}, {rng(G+6,2)}
    v_pk_add_f32 {rng(G,2)}, {rng(G,2)}, {rng(G+8,2)}
    v_pk_add_f32 {rng(G+2,2)}, {rng(G+2,2)}, {rng(G+10,2)}
    v_permlane32_swap_b32 v{G}, v{G+2}
    v_permlane32_swap_b32 v{G+1}, v{G+3}
    v_pk_add_f32 {rng(G,2)}, {rng(G,2)}, {rng(G+2,2)}
    v_permlane16_swap_b32 v{G}, v{G+1}
    v_add_f32 v{G}, v{G}, v{G+1}""")
    dpp("v_add_f32", G, "row_ror:8")
    rbf(G, G)
    a(f"""v_add_f32 v{G}, v{G}, v20
    v_cvt_pk_bf16_f32 v{G}, v{G}, v{G}
    s_mov_b32 exec_lo, 0x00ff00ff
    s_mov_b32 exec_hi, 0x00ff00ff
    buffer_store_short v{G}, v59, s[76:79], s81 offen
    s_mov_b64 exec, -1
    """)
    stamp(18)
    a.label("L_done")
    if stamps:
        a(f"""
        s_waitcnt vmcnt(0)
        s_memrealtime s[92:93]
        s_getreg_b32 s95, hwreg(HW_REG_XCC_ID)
        s_lshl_b32 s80, s2, 3
        s_add_u32 s80, s80, s3
        s_lshl_b32 s80, s80, 8
        s_add_u32 s80, s80, {ST}
        s_waitcnt lgkmcnt(0)
        v_writelane_b32 v0, s92, 20
        s_memtime s[92:93]
        s_waitcnt lgkmcnt(0)
        v_writelane_b32 v0, s92, 59
        v_writelane_b32 v0, s95, 62
        v_writelane_b32 v0, s89, 61
        v_writelane_b32 v0, s53, 60
        v_lshlrev_b32 v60, 2, v1
        buffer_store_dword v0, v60, s[36:39], s80 offen
        """)
    a.label("L_exit")
    a("s_endpgm")
    a(".fill 4096, 4, 0xbf810000" if pf else "")
    body = a.render()
    if stamps: body = body.replace("    s_lshr_b32 s82, s2, 3\n", "    s_lshr_b32 s82, s2, 3\n    s_mov_b32 s53, 0\n", 1)
    hdr = HDR + f"""; @launch grid=(256,1,1) block=(512,1,1) lds={LDS_BYTES}
.amdgcn_target "amdgcn-amd-amdhsa--gfx950"
.text
.globl {kname}
.p2align 8
.type {kname},@function
{kname}:
"""
    return hdr + body + kernel_desc(kname, 256)

if __name__ == "__main__":
    out = sys.argv[1]
    kw = json.loads(sys.argv[2]) if len(sys.argv) > 2 else {}
    open(out, "w").write(gen(**kw))
```
